```python
import torch

def _softmax(x, axis=-1):
    return torch.softmax(x, dim=axis)
def _gelu(x):
    return torch.nn.functional.gelu(x, approximate="tanh")
def _silu(x):
    return torch.nn.functional.silu(x)
def _sigmoid(x):
    return torch.sigmoid(x)
def _layernorm(x, axis=-1, eps=1e-5):
    m = x.mean(dim=axis, keepdim=True)
    v = x.var(dim=axis, keepdim=True, unbiased=False)
    return (x - m) / torch.sqrt(v + eps)
def _scatter_add(tgt, idx, src, axis=0):
    return tgt.clone().index_add_(axis, idx, src)
def _segment_sum(src, seg, n):
    out = torch.zeros((n,) + src.shape[1:], dtype=src.dtype)
    return out.index_add_(0, seg, src)
def _pad(x, pw):
    flat = tuple(v for pair in reversed(pw) for v in pair)
    return torch.nn.functional.pad(x, flat)

kernel_name = 'concat_heads__softmax_full_mha__sliding_block__prompt'

def setup_inputs():

    _w = (lambda a: (lambda t: t.to(torch.bfloat16) if t.is_floating_point() else t)(torch.as_tensor(a)))
    def _A_setup():
        B, S, D = 1, 2048, 640
        return {
            "x": _w((lambda *s: torch.randn(*s, dtype=torch.bfloat16) * 0.2)(B, S, D)),
            "wqkv": _w((lambda *s: torch.randn(*s, dtype=torch.bfloat16) * 0.4)(D, 3 * D)),
            "wo": _w((lambda *s: torch.randn(*s, dtype=torch.bfloat16) * 0.1)(D, D)),
        }
    _A_in = _A_setup()

    def _B_setup():
        B, S, D = 1, 2048, 640
        return {
            "x": _w((lambda *s: torch.randn(*s, dtype=torch.bfloat16) * 0.4)(B, S, D)),
            "wqkv": _w((lambda *s: torch.randn(*s, dtype=torch.bfloat16) * 0.4)(D, 3 * D)),
            "wo": _w((lambda *s: torch.randn(*s, dtype=torch.bfloat16) * 0.05)(D, D)),
        }
    _B_in = _B_setup()

    return {
        "A_x": _A_in["x"],
        "A_wqkv": _A_in["wqkv"],
        "A_wo": _A_in["wo"],
        "B_x": _B_in["x"],
        "B_wqkv": _B_in["wqkv"],
        "B_wo": _B_in["wo"],
    }

def reference(A_x, A_wqkv, A_wo, B_x, B_wqkv, B_wo):
    def _A_ref(x, wqkv, wo):
        B, S, D = x.shape
        H = 32; Dh = D // H
        qkv = (lambda x, *d: x.permute(*d))((x @ wqkv).reshape(B, S, 3, H, Dh), 2, 0, 3, 1, 4)
        q, k, v = qkv[0], qkv[1], qkv[2]
        scale = Dh ** -0.5
        scores = torch.einsum("bhqd,bhkd->bhqk", q, k) * scale
        p = _softmax(scores, axis=-1)
        o = torch.einsum("bhqk,bhkd->bhqd", p, v)
        return (lambda x, *d: x.permute(*d))(o, 0, 2, 1, 3).reshape(B, S, D) @ wo

    def _B_ref(x, wqkv, wo):
        B, S, D = x.shape
        H = 32; Dh = D // H; W = 256
        qkv = (lambda x, *d: x.permute(*d))((x @ wqkv).reshape(B, S, 3, H, Dh), 2, 0, 3, 1, 4)
        q, k, v = qkv[0], qkv[1], qkv[2]
        scores = torch.einsum("bhqd,bhkd->bhqk", q, k) * (Dh ** -0.5)
        idx = torch.arange(S)
        mask = (idx[:, None] - idx[None, :] >= 0) & (idx[:, None] - idx[None, :] < W)
        scores = torch.where(mask[None, None], scores, -1e9)
        p = _softmax(scores, axis=-1)
        o = torch.einsum("bhqk,bhkd->bhqd", p, v)
        return (lambda x, *d: x.permute(*d))(o, 0, 2, 1, 3).reshape(B, S, D) @ wo

    a = _A_ref(A_x, A_wqkv, A_wo)
    b = _B_ref(B_x, B_wqkv, B_wo)
    return torch.concatenate([a, b], axis=-1)
```

```python
import re

TRANS = ('v_exp_f32', 'v_log_f32', 'v_rcp_f32', 'v_rsq_f32', 'v_sqrt_f32', 'v_sin_f32', 'v_cos_f32', 'v_rcp_iflag_f32',
         'v_exp_f16', 'v_log_f16', 'v_rcp_f16')

def vr(a, n=1):
    return f"v{a}" if n == 1 else f"v[{a}:{a+n-1}]"

def sr(a, n=1):
    return f"s{a}" if n == 1 else f"s[{a}:{a+n-1}]"

def ar(a, n=1):
    return f"a{a}" if n == 1 else f"a[{a}:{a+n-1}]"

_reg_re = re.compile(r'^(-|abs\()?([vsa])(\d+|\[(\d+):(\d+)\])\)?$')

def regs_of(tok):
    tok = tok.strip()
    if tok in ('vcc',):
        return {('s', 106), ('s', 107)}
    if tok == 'vcc_lo': return {('s', 106)}
    if tok == 'vcc_hi': return {('s', 107)}
    if tok == 'exec': return {('s', 126), ('s', 127)}
    if tok == 'exec_lo': return {('s', 126)}
    if tok == 'exec_hi': return {('s', 127)}
    if tok == 'm0': return {('s', 124)}
    t = tok
    if t.startswith('-'): t = t[1:]
    if t.startswith('|') and t.endswith('|'): t = t[1:-1]
    if t.startswith('abs(') and t.endswith(')'): t = t[4:-1]
    m = re.match(r'^([vsa])(\d+)$', t)
    if m: return {(m.group(1), int(m.group(2)))}
    m = re.match(r'^([vsa])\[(\d+):(\d+)\]$', t)
    if m: return {(m.group(1), i) for i in range(int(m.group(2)), int(m.group(3)) + 1)}
    return set()

def split_ops(s):
    out, depth, cur = [], 0, ''
    for ch in s:
        if ch in '[(': depth += 1
        if ch in '])': depth -= 1
        if ch == ',' and depth == 0:
            out.append(cur.strip()); cur = ''
        else:
            cur += ch
    if cur.strip(): out.append(cur.strip())
    return out

def mfma_passes(mn):
    if '32x32x16' in mn or '32x32x8' in mn: return 8
    if '16x16x32' in mn or '16x16x16' in mn: return 4
    if '32x32x4_2b' in mn: return 16
    if '16x16x4_4b' in mn: return 8
    if '4x4x4' in mn: return 2
    raise ValueError(mn)

class Ins:
    __slots__ = ('text', 'mn', 'kind', 'w', 'r', 'ra', 'rb', 'rc', 'passes', 'states', 'vw', 'sw', 'lds_dma', 'wide_store_data', 'line')
    def __init__(self, text, line):
        self.text = text; self.line = line
        body = text.split(';')[0].strip()
        parts = body.split(None, 1)
        mn = parts[0]; self.mn = mn
        rest = parts[1] if len(parts) > 1 else ''
        ops = split_ops(rest)
        clean = []
        mods = []
        for o in ops:
            p = o.split()
            if not p: continue
            clean.append(p[0]); mods += p[1:]
        self.w = set(); self.r = set(); self.ra = set(); self.rb = set(); self.rc = set()
        self.passes = 0; self.states = 1; self.lds_dma = False; self.wide_store_data = set()
        R = [regs_of(o) for o in clean]
        if mn.startswith('v_mfma'):
            self.kind = 'mfma'; self.passes = mfma_passes(mn)
            self.w = R[0]; self.ra = R[1]; self.rb = R[2]; self.rc = R[3]; self.r = R[1] | R[2] | R[3]
        elif mn.startswith('v_'):
            self.kind = 'trans' if mn.replace('_e32', '').replace('_e64', '') in TRANS else 'valu'
            if mn.startswith('v_permlane') and 'swap' in mn:
                self.w = R[0] | R[1]; self.r = R[0] | R[1]
            elif mn.startswith('v_cmp'):
                self.w = R[0]; self.r = set().union(*R[1:])
                if mn.startswith('v_cmpx'): self.w |= regs_of('exec')
            elif '_co_' in mn or mn.startswith('v_div_scale') or mn.startswith('v_mad_u64'):
                self.w = R[0] | R[1]; self.r = set().union(*R[2:])
            elif mn == 'v_nop':
                pass
            else:
                self.w = R[0]; self.r = set().union(*R[1:]) if len(R) > 1 else set()
                if mn.startswith('v_fmac') or mn.startswith('v_writelane') or 'sdwa' in mn or 'dpp' in mn:
                    self.r |= R[0]
        elif mn.startswith('ds_'):
            self.kind = 'ds'
            if 'read' in mn or 'permute' in mn or 'swizzle' in mn:
                self.w = R[0]; self.r = set().union(*R[1:])
            else:
                self.r = set().union(*R)
        elif mn.startswith('buffer_') or mn.startswith('global_'):
            self.kind = 'vmem'
            if 'lds' in mods or '_lds_' in mn:
                self.lds_dma = True; self.r = set().union(*R) | regs_of('m0')
            elif 'load' in mn:
                self.w = R[0]; self.r = set().union(*R[1:])
            elif mn.startswith('buffer_inv') or mn.startswith('buffer_wb'):
                pass
            else:
                self.r = set().union(*R)
                if 'x4' in mn or 'x3' in mn:
                    self.wide_store_data = R[0] if mn.startswith('buffer_') else R[1]
        elif mn.startswith('s_'):
            self.kind = 'salu'
            if mn == 's_nop':
                self.states = int(clean[0], 0) + 1
            elif mn.startswith('s_cmp') or mn.startswith('s_cbranch') or mn in ('s_branch', 's_barrier', 's_waitcnt', 's_endpgm', 's_setprio', 's_sleep'):
                self.r = set().union(*R) if R else set()
            else:
                self.w = R[0] if R else set(); self.r = set().union(*R[1:]) if len(R) > 1 else set()
                if 'saveexec' in mn: self.w |= regs_of('exec')
        else:
            raise ValueError("unknown instr " + text)

def check_hazards(lines, verbose=True):
    ins = []
    for n, l in enumerate(lines):
        t = l.split(';')[0].strip()
        if not t or t.endswith(':') or t.startswith('.'):
            continue
        ins.append(Ins(t, n))
    errs = []
    isv = lambda S: {x for x in S if x[0] in 'va'}
    iss = lambda S: {x for x in S if x[0] == 's'}
    for i, c in enumerate(ins):
        dist = 0
        for j in range(i - 1, max(-1, i - 24), -1):
            p = ins[j]
            need = 0; why = ''
            def req(n, w):
                nonlocal need, why
                if n > need: need, why = n, w
            pval = p.kind in ('valu', 'trans')
            cval = c.kind in ('valu', 'trans')
            if pval and c.kind == 'mfma' and isv(p.w) & c.r: req(2, 'VALU->MFMA operand')
            if p.kind == 'mfma':
                tab = {2: 5, 4: 8, 8: 12, 16: 20}[p.passes]
                if cval and (p.w & (c.r | c.w)): req(tab, 'MFMA D->VALU')
                if c.kind in ('ds', 'vmem') and (p.w & (c.r | c.w)): req(tab, 'MFMA D->mem')
                if c.kind == 'mfma':
                    if p.w & (c.ra | c.rb): req(tab, 'MFMA D->MFMA A/B')
                    if p.w & c.rc:
                        if p.w == c.rc and p.passes == c.passes:
                            req(2 if p.passes == 2 else 0, 'chain')
                        else:
                            req({2: 4, 4: 6, 8: 10, 16: 18}[p.passes], 'MFMA D->SrcC overlap')
                    elif p.w & c.w:
                        req({2: 4, 4: 6, 8: 10, 16: 18}[p.passes], 'MFMA WAW (conservative)')
                if cval and (isv(p.rc) & c.w): req({2: 1, 4: 3, 8: 7, 16: 15}[p.passes], 'SrcC WAR')
            if p.kind == 'trans' and c.kind in ('valu', 'mfma') and (p.w & c.r): req(1 if c.kind == 'valu' else 2, 'trans->VALU')
            if pval and c.mn.startswith('v_permlane') and (isv(p.w) & c.r): req(2, 'VALU->permlane')
            if pval and 'dpp' in c.mn and (isv(p.w) & c.r): req(2, 'VALU->DPP')
            if pval and (c.mn.startswith('v_readfirstlane') or c.mn.startswith('v_readlane')) and (isv(p.w) & c.r): req(1, 'VALU->readlane')
            if pval and iss(p.w):
                if cval and (iss(p.w) & c.r): req(2, 'VALU SGPR->VALU const')
                if c.kind == 'vmem' and (iss(p.w) & c.r): req(5, 'VALU SGPR->VMEM')
                if c.kind == 'mfma' and (regs_of('exec') & p.w): req(4, 'VALU exec->MFMA')
            if p.kind == 'salu' and ('s', 124) in p.w and c.lds_dma: req(1, 'M0->LDS DMA')
            if p.wide_store_data and (p.wide_store_data & c.w): req(2 if cval else 1, 'wide store WAR')
            if pval and ('sdwa' in p.mn or 'op_sel' in p.text) and cval and (p.w & (c.r | c.w)): req(1, 'opsel/sdwa')
            if need > dist:
                errs.append((p.line, c.line, need, dist, why, p.text, c.text))
            dist += p.states
            if dist >= 20: break
    if verbose:
        for e in errs[:40]:
            print(f"HAZARD {e[4]}: need {e[2]} have {e[3]}\n   [{e[0]}] {e[5]}\n   [{e[1]}] {e[6]}")
    return errs


class Asm:
    def __init__(self):
        self.lines = []
        self.lgkm = []
        self.vm = []
    def __call__(self, s):
        for l in s.split('\n'):
            self.lines.append('    ' + l.strip() if not l.strip().endswith(':') else l.strip())
    def label(self, n):
        self.lines.append(n + ':')
    def comment(self, c):
        self.lines.append('    ; ' + c)
    def ds(self, s, tag):
        self(s); self.lgkm.append(tag)
    def vmem(self, s, tag):
        self(s); self.vm.append(tag)
    def wait_lgkm(self, *tags):
        idx = max((i for i, t in enumerate(self.lgkm) if t in tags), default=-1)
        if idx < 0: return
        n = len(self.lgkm) - 1 - idx
        assert n <= 15, n
        self(f"s_waitcnt lgkmcnt({n})")
        self.lgkm = self.lgkm[idx + 1:]
    def wait_vm(self, *tags):
        idx = max((i for i, t in enumerate(self.vm) if t in tags), default=-1)
        if idx < 0: return
        n = len(self.vm) - 1 - idx
        assert n <= 63, n
        self(f"s_waitcnt vmcnt({n})")
        self.vm = self.vm[idx + 1:]
    def wait_all(self):
        self("s_waitcnt vmcnt(0) lgkmcnt(0)"); self.vm = []; self.lgkm = []
    def text(self):
        return '\n'.join(self.lines) + '\n'
```

```python
import sys, math, struct
from asmlib import *

NAME = "concat_heads__softmax_full_mha__sliding_block__prompt"
OPT = dict(stamps=False, stop_after=None)
for arg in sys.argv[1:]:
    if '=' in arg:
        k, v = arg.split('='); OPT[k] = int(v) if v.lstrip('-').isdigit() else v

def f32(x):
    return "0x%08x" % struct.unpack('<I', struct.pack('<f', x))[0]

PSTRIDE = 0x800000
KVH = 163840
QOFF = 0x500000
QH = 81920
OOFF = 0x1000000
OSTRIDE = 0x280000
STAMP = 0x2000000
FLAGS = 0x1800000
NREP = OPT.get('nrep', 4)
REPSTRIDE = 2048 + 256
FLSTRIDE = 0x10000
QSCALE = 20 ** -0.5 * math.log2(math.e)

S_AX, S_AW, S_AWO, S_BX, S_BW, S_BWO, S_OUT, S_DBG, S_WS = 4, 6, 8, 10, 12, 14, 16, 18, 20
SRD_X, SRD_W, SRD_WS, SRD_OUT = 24, 28, 32, 36
S_W = 40
S_X = 41
S_Y = 42
S_CB, S_TB = 43, 44
S_HEAD, S_QB = 45, 46
S_T0, S_T1, S_T2, S_T3, S_T4, S_T5 = 48, 49, 50, 51, 52, 53
S_STG = 54
S_SLOT = 55
S_XOFF, S_WOFF = 56, 57
S_DELTA = 58
S_POFF2 = 59
S_SCALE = 60
S_POFF = 62
S_KVOFF = 63
S_M = 64
S_CNT = 72
S_C48K = 73
S_KC, S_XB, S_WB = 74, 75, 76
S_C640 = 77
S_NONCE = 78
S_FL = 47
S_ST = 80

a = Asm()

def stamp(i):
    if OPT['stamps']:
        a(f"s_memrealtime {sr(S_ST + 2 * i, 2)}")

def trace(vreg, sidx):
    if OPT.get('trace'):
        a("s_memrealtime s[100:101]")
        a("s_waitcnt lgkmcnt(0)")
        a(f"s_mov_b32 m0, {sr(sidx)}")
        a(f"v_writelane_b32 {vr(vreg)}, s100, m0")

def srd(dst, ptr, size):
    a(f"s_mov_b32 {sr(dst)}, {sr(ptr)}")
    a(f"s_and_b32 {sr(dst+1)}, {sr(ptr+1)}, 0xffff")
    a(f"s_mov_b32 {sr(dst+2)}, {size}")
    a(f"s_mov_b32 {sr(dst+3)}, 0x00020000")

def get_nonce(lab, vt):
    a("s_waitcnt lgkmcnt(0)")
    a(f"s_cmp_lg_u64 {sr(S_NONCE,2)}, 0")
    a(f"s_cbranch_scc1 {lab}_done")
    a(f"v_mov_b32 {vr(vt)}, 0")
    a(f"s_mov_b32 {sr(S_CNT)}, 0x4000")
    a.label(lab)
    a(f"global_load_dwordx2 {vr(vt+2,2)}, {vr(vt)}, {sr(S_DBG,2)} sc1")
    a(f"s_sub_u32 {sr(S_CNT)}, {sr(S_CNT)}, 1")
    a("s_waitcnt vmcnt(0)")
    a(f"v_readfirstlane_b32 {sr(S_NONCE)}, {vr(vt+2)}")
    a(f"v_readfirstlane_b32 {sr(S_NONCE+1)}, {vr(vt+3)}")
    a(f"s_cmp_eq_u32 {sr(S_CNT)}, 0")
    a(f"s_cbranch_scc1 {lab}_done")
    a("s_sleep 8")
    a(f"s_cmp_eq_u64 {sr(S_NONCE,2)}, 0")
    a(f"s_cbranch_scc1 {lab}")
    a.label(lab + "_done")

def poll_flags(lab, vaddrs, vt, soff):
    a(f"s_mov_b32 {sr(S_CNT)}, 0x4000")
    a.label(lab)
    for i, va in enumerate(vaddrs):
        a(f"buffer_load_dwordx2 {vr(vt+2*i,2)}, {vr(va)}, {sr(SRD_WS,4)}, {sr(soff)} offen sc1")
    a(f"s_sub_u32 {sr(S_CNT)}, {sr(S_CNT)}, 1")
    a("s_waitcnt vmcnt(0)")
    a(f"v_cmp_ne_u64 vcc, {sr(S_NONCE,2)}, {vr(vt,2)}")
    for i in range(1, len(vaddrs)):
        a(f"v_cmp_ne_u64 {sr(S_T0,2)}, {sr(S_NONCE,2)}, {vr(vt+2*i,2)}")
        a("s_nop 0")
        a(f"s_or_b64 vcc, vcc, {sr(S_T0,2)}")
    a(f"s_cmp_eq_u32 {sr(S_CNT)}, 0")
    a(f"s_cbranch_scc1 {lab}_done")
    a("s_nop 2")
    a(f"s_cbranch_vccz {lab}_done")
    a(f"s_sleep {OPT.get('psleep', 8)}")
    a(f"s_branch {lab}")
    a.label(lab + "_done")

def signal_flag(vt, soff):
    a(f"v_mul_u32_u24 {vr(vt)}, {REPSTRIDE}, v0")
    a(f"v_mov_b32 {vr(vt+2)}, {sr(S_NONCE)}")
    a(f"v_mov_b32 {vr(vt+3)}, {sr(S_NONCE+1)}")
    a(f"s_mov_b64 exec, {(1 << NREP) - 1}")
    a(f"buffer_store_dwordx2 {vr(vt+2,2)}, {vr(vt)}, {sr(SRD_WS,4)}, {sr(soff)} offen sc1")
    a("s_mov_b64 exec, -1")

def g_flag_addrs(v1, v2, t):
    a(f"v_bfe_u32 {vr(t)}, v0, 4, 1")
    a(f"v_mul_u32_u24 {vr(t)}, 19, {vr(t)}")
    a(f"s_mul_i32 {sr(S_T0)}, {sr(S_HEAD)}, 20")
    a(f"v_add_u32 {vr(t)}, {sr(S_T0)}, {vr(t)}")
    a(f"v_and_b32 {vr(t)}, 0xffffff80, {vr(t)}")
    a(f"s_and_b32 {sr(S_T0)}, {sr(S_QB)}, {NREP-1}")
    a(f"s_mul_i32 {sr(S_T0)}, {sr(S_T0)}, {REPSTRIDE}")
    a(f"v_add_u32 {vr(t)}, {sr(S_T0)}, {vr(t)}")
    a(f"v_and_b32 {vr(v2)}, 1, v0")
    a(f"v_lshl_add_u32 {vr(v2)}, {vr(v2)}, 6, {vr(t)}")
    a(f"s_lshl_b32 {sr(S_T0)}, {sr(S_QB)}, 3")
    a(f"v_add_u32 {vr(v2)}, {sr(S_T0)}, {vr(v2)}")
    a(f"v_and_b32 {vr(v1)}, 15, v0")
    a(f"v_lshl_add_u32 {vr(v1)}, {vr(v1)}, 3, {vr(t)}")
    a(f"v_lshrrev_b32 {vr(t)}, 5, v0")
    a(f"v_mul_u32_u24 {vr(t)}, 640, {vr(t)}")
    a(f"v_add3_u32 {vr(v1)}, {vr(v1)}, {vr(t)}, {sr(S_C640)}")

def prologue():
    a("s_cmp_ge_u32 s2, 256")
    a("s_cbranch_scc1 L_exit")
    a(f"s_load_dwordx16 {sr(4,16)}, s[0:1], 0")
    a(f"s_load_dwordx2 {sr(S_WS,2)}, s[0:1], 64")
    stamp(0)
    a("v_lshrrev_b32 v1, 6, v0")
    a(f"s_and_b32 {sr(S_X)}, s2, 7")
    a(f"v_readfirstlane_b32 {sr(S_W)}, v1")
    a("v_and_b32 v0, 63, v0")
    a(f"s_lshr_b32 {sr(S_Y)}, s2, 3")
    a(f"s_and_b32 {sr(S_T0)}, {sr(S_X)}, 1")
    a(f"s_mul_i32 {sr(S_T0)}, {sr(S_T0)}, 30")
    a(f"s_add_u32 {sr(S_T0)}, {sr(S_T0)}, {sr(S_Y)}")
    a(f"s_lshr_b32 {sr(S_CB)}, {sr(S_T0)}, 2")
    a(f"s_and_b32 {sr(S_T0)}, {sr(S_T0)}, 3")
    a(f"s_lshr_b32 {sr(S_TB)}, {sr(S_X)}, 1")
    a(f"s_lshl_b32 {sr(S_TB)}, {sr(S_TB)}, 2")
    a(f"s_add_u32 {sr(S_TB)}, {sr(S_TB)}, {sr(S_T0)}")
    a(f"s_and_b32 {sr(S_T0)}, {sr(S_Y)}, 3")
    a(f"s_lshl_b32 {sr(S_HEAD)}, {sr(S_X)}, 2")
    a(f"s_add_u32 {sr(S_HEAD)}, {sr(S_HEAD)}, {sr(S_T0)}")
    a(f"s_lshr_b32 {sr(S_QB)}, {sr(S_Y)}, 2")
    a(f"s_mul_i32 {sr(S_KVOFF)}, {sr(S_HEAD)}, {KVH}")
    a(f"s_cmp_ge_u32 {sr(S_X)}, 4")
    a("s_waitcnt lgkmcnt(0)")
    a(f"s_cselect_b64 {sr(S_T0,2)}, {sr(S_BX,2)}, {sr(S_AX,2)}")
    a(f"s_cselect_b64 {sr(S_T2,2)}, {sr(S_BW,2)}, {sr(S_AW,2)}")
    a(f"s_cselect_b32 {sr(S_POFF)}, {PSTRIDE}, 0")
    srd(SRD_X, S_T0, 2048 * 1280)
    srd(SRD_W, S_T2, 640 * 3840)
    srd(SRD_WS, S_WS, 0x10000000)
    srd(SRD_OUT, S_OUT, 2048 * 2560)
    a(f"s_mov_b32 {sr(S_C640)}, 640")
    a(f"s_mov_b32 {sr(S_FL)}, {FLAGS}")
    a(f"s_or_b32 {sr(S_T0)}, s2, {sr(S_W)}")
    a(f"s_cmp_lg_u32 {sr(S_T0)}, 0")
    a("s_cbranch_scc1 L_nononce")
    a(f"s_memrealtime {sr(S_NONCE,2)}")
    a("v_mov_b32 v1, 0")
    a("s_waitcnt lgkmcnt(0)")
    a(f"s_or_b32 {sr(S_NONCE)}, {sr(S_NONCE)}, 1")
    a(f"v_mov_b32 v2, {sr(S_NONCE)}")
    a(f"v_mov_b32 v3, {sr(S_NONCE+1)}")
    a("s_mov_b64 exec, 1")
    a(f"global_store_dwordx2 v1, v[2:3], {sr(S_DBG,2)} sc1")
    a("s_mov_b64 exec, -1")
    a.label("L_nononce")
    a(f"s_cmp_ge_u32 {sr(S_Y)}, 30")
    a("s_cbranch_scc1 L_attn")

V_LX, V_LW = 2, 3
SLOT = 49152
NSLOT = 3

def dma(vaddr, srdr, soff, sc1=False, tag=None):
    s = f"buffer_load_dwordx4 {vr(vaddr)}, {sr(srdr,4)}, {sr(soff)} offen" + (" sc1" if sc1 else "") + " lds"
    if tag is None: a(s)
    else: a.vmem(s, tag)

def g_issue_stage():
    for j in range(4):
        for jj in range(2):
            a(f"s_add_u32 m0, {sr(S_SLOT)}, {(2*j+jj)*4096}")
            a(f"s_add_u32 {sr(S_T0)}, {sr(S_XOFF)}, {(2*j+jj)*40960}")
            dma(V_LX, SRD_X, S_T0)
        a(f"s_add_u32 m0, {sr(S_SLOT)}, {32768 + j*4096}")
        a(f"s_add_u32 {sr(S_T1)}, {sr(S_WOFF)}, {j*61440}")
        dma(V_LW, SRD_W, S_T1)
    a(f"s_add_u32 {sr(S_KC)}, {sr(S_KC)}, 1")
    a(f"s_cmp_eq_u32 {sr(S_KC)}, 10")
    a(f"s_cselect_b32 {sr(S_KC)}, 0, {sr(S_KC)}")
    a(f"s_lshl_b32 {sr(S_T0)}, {sr(S_KC)}, 7")
    a(f"s_add_u32 {sr(S_XOFF)}, {sr(S_XB)}, {sr(S_T0)}")
    a(f"s_mul_i32 {sr(S_T0)}, {sr(S_KC)}, 245760")
    a(f"s_add_u32 {sr(S_WOFF)}, {sr(S_WB)}, {sr(S_T0)}")
    a(f"s_add_u32 {sr(S_SLOT)}, {sr(S_SLOT)}, {SLOT}")
    a(f"s_cmp_ge_u32 {sr(S_SLOT)}, {SLOT*NSLOT}")
    a(f"s_cselect_b32 {sr(S_T0)}, {SLOT*NSLOT}, 0")
    a(f"s_sub_u32 {sr(S_SLOT)}, {sr(S_SLOT)}, {sr(S_T0)}")

def g_loader():
    a.label("L_loader")
    a(f"s_sub_u32 {sr(S_T2)}, {sr(S_W)}, 4")
    a(f"s_lshl_b32 {sr(S_SLOT)}, {sr(S_T2)}, 10")
    a("v_lshrrev_b32 v5, 3, v0")
    a(f"s_lshl_b32 {sr(S_T0)}, {sr(S_T2)}, 3")
    a(f"v_add_u32 v5, {sr(S_T0)}, v5")
    a("v_lshrrev_b32 v6, 1, v5")
    a("v_xor_b32 v6, v6, v0")
    a("v_and_b32 v6, 7, v6")
    a("v_lshlrev_b32 v6, 4, v6")
    a(f"v_mov_b32 v7, 1280")
    a(f"v_mad_u32_u24 {vr(V_LX)}, v5, v7, v6")
    a("v_lshrrev_b32 v5, 4, v0")
    a("v_lshlrev_b32 v6, 2, v5")
    a("v_xor_b32 v6, v6, v0")
    a("v_and_b32 v6, 15, v6")
    a("v_lshlrev_b32 v6, 4, v6")
    a(f"s_lshl_b32 {sr(S_T0)}, {sr(S_T2)}, 2")
    a(f"v_add_u32 v5, {sr(S_T0)}, v5")
    a(f"v_mov_b32 v7, 3840")
    a(f"v_mad_u32_u24 {vr(V_LW)}, v5, v7, v6")
    D = 2
    a(f"s_and_b32 {sr(S_T0)}, {sr(S_TB)}, 7")
    a(f"s_mul_i32 {sr(S_XB)}, {sr(S_T0)}, 327680")
    a(f"s_lshl_b32 {sr(S_WB)}, {sr(S_CB)}, 8")
    if OPT.get('rot', 1):
        a(f"s_mul_i32 {sr(S_T0)}, {sr(S_Y)}, 52")
        a(f"s_lshr_b32 {sr(S_T0)}, {sr(S_T0)}, 8")
        a(f"s_mul_i32 {sr(S_T0)}, {sr(S_T0)}, 5")
        a(f"s_sub_u32 {sr(S_KC)}, {sr(S_Y)}, {sr(S_T0)}")
        a(f"s_lshl_b32 {sr(S_KC)}, {sr(S_KC)}, 1")
    else:
        a(f"s_mov_b32 {sr(S_KC)}, 0")
    a(f"s_lshl_b32 {sr(S_T0)}, {sr(S_KC)}, 7")
    a(f"s_add_u32 {sr(S_XOFF)}, {sr(S_XB)}, {sr(S_T0)}")
    a(f"s_mul_i32 {sr(S_T0)}, {sr(S_KC)}, 245760")
    a(f"s_add_u32 {sr(S_WOFF)}, {sr(S_WB)}, {sr(S_T0)}")
    a(f"s_mov_b32 {sr(S_STG)}, 0")
    a.label("L_ld_loop")
    a(f"s_cmp_lt_u32 {sr(S_STG)}, {D}")
    a("s_cbranch_scc1 L_ld_nb")
    a(f"s_waitcnt vmcnt({(D-1)*12})")
    trace(250, S_STG)
    a("s_barrier")
    trace(251, S_STG)
    a.label("L_ld_nb")
    g_issue_stage()
    trace(252, S_STG)
    a(f"s_add_u32 {sr(S_STG)}, {sr(S_STG)}, 1")
    a(f"s_cmp_lt_u32 {sr(S_STG)}, 10")
    a("s_cbranch_scc1 L_ld_loop")
    a("s_waitcnt vmcnt(12)")
    trace(250, S_STG)
    a("s_barrier")
    a(f"s_add_u32 {sr(S_STG)}, {sr(S_STG)}, 1")
    a("s_waitcnt vmcnt(0)")
    trace(250, S_STG)
    a("s_barrier")

V_XA = 2
V_WA = 6
V_SA = 8
V_TMP = 16
V_F = 32
V_ACC = 128
V_PK = 32

def g_reads(ks):
    f = V_F + 24 * ks
    for T in range(2):
        for s2 in range(2):
            a.ds(f"ds_read_b64_tr_b16 {vr(f+16+4*T+2*s2,2)}, {vr(V_WA+T)} offset:{ks*4096+s2*1024}", ('f', ks))
        for tt in range(2):
            a.ds(f"ds_read_b128 {vr(f+4*(2*T+tt),4)}, {vr(V_XA+ks)} offset:{(2*T+tt)*4096}", ('f', ks))

def g_mfmas(ks, isv):
    f = V_F + 24 * ks
    for T in range(2):
        for tt in range(4):
            acc = vr(V_ACC + 16 * (T * 4 + tt), 16)
            x = vr(f + 4 * tt, 4); w = vr(f + 16 + 4 * T, 4)
            A, B = (x, w) if isv else (w, x)
            a(f"v_mfma_f32_32x32x16_bf16 {acc}, {A}, {B}, {acc}")

def g_epilogue(isv, tag):
    a("s_nop 7")
    if not isv:
        a(f"s_cmp_ge_u32 {sr(S_CB)}, 5")
        a(f"s_cbranch_scc1 L_nosc")
        for i in range(64):
            a(f"v_pk_mul_f32 {vr(V_ACC+2*i,2)}, {vr(V_ACC+2*i,2)}, {sr(S_SCALE,2)}")
        a.label("L_nosc")
    for t in range(8):
        acc = V_ACC + 16 * t
        T, tt = t // 4, t % 4
        so = S_POFF if tt < 2 else S_POFF2
        for i in range(8):
            a(f"v_cvt_pk_bf16_f32 {vr(V_PK+8*t+i)}, {vr(acc+2*i)}, {vr(acc+2*i+1)}")
        if isv:
            for j in range(2):
                a(f"buffer_store_dwordx4 {vr(V_PK+8*t+4*j,4)}, {vr(V_SA+T)}, {sr(SRD_WS,4)}, {sr(so)} offen offset:{(tt%2)*1280+j*640} sc1")
        elif t % 2 == 1:
            for u in range(2):
                pa = V_PK + 8 * (t - 1) + 4 * u
                pb = V_PK + 8 * t + 4 * u
                a(f"s_mov_b64 exec, {sr(S_M+2*(2*T+u),2)}")
                a(f"v_swap_b32 {vr(pa+2)}, {vr(pb)}")
                a(f"v_swap_b32 {vr(pa+3)}, {vr(pb+1)}")
                a("s_mov_b64 exec, -1")
                a(f"buffer_store_dwordx4 {vr(pa,4)}, {vr(V_SA+2*(2*T+u))}, {sr(SRD_WS,4)}, {sr(so)} offen sc1")
                a(f"buffer_store_dwordx4 {vr(pb,4)}, {vr(V_SA+2*(2*T+u)+1)}, {sr(SRD_WS,4)}, {sr(so)} offen sc1")
    a("s_nop 1")

def g_compute():
    t = V_TMP
    a(f"v_and_b32 {vr(t)}, 31, v0")
    a(f"v_lshrrev_b32 {vr(t+1)}, 5, v0")
    a(f"s_and_b32 {sr(S_T2)}, {sr(S_W)}, 1")
    a(f"s_lshr_b32 {sr(S_T3)}, {sr(S_W)}, 1")
    a(f"v_bfe_u32 {vr(t+2)}, v0, 1, 3")
    a(f"v_xor_b32 {vr(t+2)}, {vr(t+2)}, {vr(t+1)}")
    a(f"s_lshl_b32 {sr(S_T0)}, {sr(S_T2)}, 14")
    a(f"v_lshl_add_u32 {vr(t+3)}, {vr(t)}, 7, {sr(S_T0)}")
    for ks in range(4):
        a(f"v_xor_b32 {vr(t+4)}, {2*ks}, {vr(t+2)}")
        a(f"v_lshl_add_u32 {vr(V_XA+ks)}, {vr(t+4)}, 4, {vr(t+3)}")
    a(f"v_bfe_u32 {vr(t+2)}, v0, 2, 2")
    a(f"v_and_b32 {vr(t+3)}, 1, v0")
    a(f"v_bfe_u32 {vr(t+4)}, v0, 1, 1")
    a(f"s_cmp_ge_u32 {sr(S_CB)}, 10")
    a("s_cbranch_scc1 L_gc_v1")
    a(f"v_swap_b32 {vr(t+3)}, {vr(t+4)}")
    a.label("L_gc_v1")
    a(f"v_bfe_u32 {vr(t+5)}, v0, 4, 1")
    a(f"v_lshl_add_u32 {vr(t+4)}, {vr(t+5)}, 1, {vr(t+4)}")
    a(f"v_lshl_add_u32 {vr(t+5)}, {vr(t+1)}, 3, {vr(t+2)}")
    a(f"v_lshlrev_b32 {vr(t+5)}, 8, {vr(t+5)}")
    a(f"v_lshl_add_u32 {vr(t+5)}, {vr(t+3)}, 3, {vr(t+5)}")
    a(f"v_lshl_add_u32 {vr(t+5)}, {vr(t+4)}, 4, {vr(t+5)}")
    a(f"v_add_u32 {vr(t+5)}, 32768, {vr(t+5)}")
    for T in range(2):
        a(f"s_lshl_b32 {sr(S_T0)}, {sr(S_T3)}, 1")
        a(f"s_add_u32 {sr(S_T0)}, {sr(S_T0)}, {T}")
        a(f"v_xor_b32 {vr(t+6)}, {sr(S_T0)}, {vr(t+2)}")
        a(f"v_lshl_add_u32 {vr(V_WA+T)}, {vr(t+6)}, 6, {vr(t+5)}")
    a(f"s_mov_b32 {sr(S_STG)}, 0")
    a(f"s_mov_b32 {sr(S_SLOT)}, 0")
    a(f"s_mov_b32 {sr(S_C48K)}, {SLOT}")
    for i in range(64):
        a(f"v_mov_b64 {vr(V_ACC+2*i,2)}, 0")
    a(f"s_and_b32 {sr(S_T4)}, {sr(S_TB)}, 7")
    a(f"s_lshl_b32 {sr(S_T4)}, {sr(S_T4)}, 1")
    a(f"s_add_u32 {sr(S_T4)}, {sr(S_T4)}, {sr(S_T2)}")
    a(f"s_lshl_b32 {sr(S_T4)}, {sr(S_T4)}, 1")
    a(f"s_cmp_ge_u32 {sr(S_CB)}, 10")
    a("s_cbranch_scc1 L_gv")
    a(f"s_cmp_lt_u32 {sr(S_CB)}, 5")
    a(f"s_mov_b32 {sr(S_SCALE)}, {f32(QSCALE)}")
    a(f"s_cselect_b32 {sr(S_T0)}, {QOFF}, 0")
    a(f"s_cselect_b32 {sr(S_T5)}, 0, 1")
    a(f"s_lshl_b32 {sr(S_T1)}, {QH}, {sr(S_T5)}")
    a(f"s_lshl_b32 {sr(S_T5)}, 2560, {sr(S_T5)}")
    a(f"s_add_u32 {sr(S_POFF2)}, {sr(S_POFF)}, {sr(S_T5)}")
    a(f"s_cmp_lt_u32 {sr(S_CB)}, 5")
    a(f"s_cselect_b32 {sr(S_T2)}, 0, 5")
    a(f"s_mov_b32 {sr(S_SCALE+1)}, {sr(S_SCALE)}")
    a(f"s_mul_i32 {sr(S_T4)}, {sr(S_T4)}, {sr(S_T5)}")
    a(f"s_add_u32 {sr(S_T0)}, {sr(S_T0)}, {sr(S_T4)}")
    a(f"s_sub_u32 {sr(S_T2)}, {sr(S_CB)}, {sr(S_T2)}")
    a(f"s_lshl_b32 {sr(S_T2)}, {sr(S_T2)}, 4")
    a(f"s_lshl_b32 {sr(S_T3)}, {sr(S_T3)}, 3")
    a(f"s_add_u32 {sr(S_T2)}, {sr(S_T2)}, {sr(S_T3)}")
    a(f"v_lshl_add_u32 {vr(t+2)}, {vr(t)}, 4, {sr(S_T0)}")
    a(f"v_add_u32 {vr(t+3)}, {sr(S_T2)}, {vr(t+1)}")
    a(f"v_mov_b32 {vr(t+8)}, {sr(S_T1)}")
    a(f"v_mov_b32 {vr(t+9)}, 1024")
    for q in range(4):
        a(f"v_add_u32 {vr(t+4)}, {2*q}, {vr(t+3)}")
        a(f"v_mul_u32_u24 {vr(t+5)}, 205, {vr(t+4)}")
        a(f"v_lshrrev_b32 {vr(t+5)}, 10, {vr(t+5)}")
        a(f"v_mul_u32_u24 {vr(t+6)}, 5, {vr(t+5)}")
        a(f"v_sub_u32 {vr(t+6)}, {vr(t+4)}, {vr(t+6)}")
        a(f"v_lshlrev_b32 {vr(t+5)}, 1, {vr(t+5)}")
        a(f"v_cmp_lt_u32 vcc, 2, {vr(t+6)}")
        a(f"v_cmp_eq_u32 {sr(S_M+2*q,2)}, 2, {vr(t+6)}")
        a("s_nop 0")
        a(f"v_addc_co_u32 {vr(t+5)}, vcc, 0, {vr(t+5)}, vcc")
        a(f"v_cmp_lt_u32 vcc, 2, {vr(t+6)}")
        a(f"v_subrev_u32 {vr(t+7)}, 3, {vr(t+6)}")
        a("s_nop 0")
        a(f"v_cndmask_b32 {vr(t+6)}, {vr(t+6)}, {vr(t+7)}, vcc")
        a(f"v_cndmask_b32 {vr(t+6)}, {vr(t+6)}, 4, {sr(S_M+2*q,2)}")
        a(f"v_mul_lo_u32 {vr(t+5)}, {vr(t+5)}, {vr(t+8)}")
        a(f"v_lshl_add_u32 {vr(t+5)}, {vr(t+6)}, 9, {vr(t+5)}")
        a(f"v_add_u32 {vr(V_SA+2*q)}, {vr(t+5)}, {vr(t+2)}")
        a(f"v_cndmask_b32 {vr(t+7)}, {vr(t+9)}, {vr(t+8)}, {sr(S_M+2*q,2)}")
        a(f"v_add_u32 {vr(V_SA+2*q+1)}, {vr(V_SA+2*q)}, {vr(t+7)}")
    g_body(False, "qk")
    a.label("L_gv")
    a(f"s_add_u32 {sr(S_POFF2)}, {sr(S_POFF)}, 5120")
    a(f"s_sub_u32 {sr(S_T0)}, {sr(S_CB)}, 10")
    a(f"s_lshl_b32 {sr(S_T0)}, {sr(S_T0)}, 7")
    a(f"s_lshl_b32 {sr(S_T3)}, {sr(S_T3)}, 6")
    a(f"s_add_u32 {sr(S_T0)}, {sr(S_T0)}, {sr(S_T3)}")
    a(f"s_mul_i32 {sr(S_T4)}, {sr(S_T4)}, 5120")
    a(f"s_add_u32 {sr(S_T4)}, {sr(S_T4)}, 2560")
    a(f"v_mul_u32_u24 {vr(t+2)}, 320, {vr(t+1)}")
    a(f"v_add_u32 {vr(t+2)}, {sr(S_T4)}, {vr(t+2)}")
    a(f"v_mov_b32 {vr(t+8)}, {KVH}")
    for T in range(2):
        a(f"v_add_u32 {vr(t+3)}, {sr(S_T0)}, {vr(t)}")
        if T: a(f"v_add_u32 {vr(t+3)}, 32, {vr(t+3)}")
        a(f"v_mul_u32_u24 {vr(t+4)}, 3277, {vr(t+3)}")
        a(f"v_lshrrev_b32 {vr(t+4)}, 16, {vr(t+4)}")
        a(f"v_mul_u32_u24 {vr(t+5)}, 20, {vr(t+4)}")
        a(f"v_sub_u32 {vr(t+5)}, {vr(t+3)}, {vr(t+5)}")
        a(f"v_mul_lo_u32 {vr(t+4)}, {vr(t+4)}, {vr(t+8)}")
        a(f"v_lshl_add_u32 {vr(t+4)}, {vr(t+5)}, 4, {vr(t+4)}")
        a(f"v_add_u32 {vr(V_SA+T)}, {vr(t+4)}, {vr(t+2)}")
    g_body(True, "v")

def g_body(isv, tag):
    a("s_barrier")
    stamp(1)
    a.lgkm = []
    g_reads(0); g_reads(1)
    a.label(f"L_gl_{tag}")
    a.wait_lgkm(('f', 0))
    g_reads(2)
    g_mfmas(0, isv)
    a.wait_lgkm(('f', 1))
    g_reads(3)
    g_mfmas(1, isv)
    a(f"s_add_u32 {sr(S_SLOT)}, {sr(S_SLOT)}, 1")
    a(f"s_cmp_eq_u32 {sr(S_SLOT)}, {NSLOT}")
    a(f"s_cselect_b32 {sr(S_DELTA)}, {(-(NSLOT-1)*SLOT) & 0xffffffff}, {sr(S_C48K)}")
    a(f"s_cselect_b32 {sr(S_SLOT)}, 0, {sr(S_SLOT)}")
    for i in range(6):
        a(f"v_add_u32 {vr(V_XA+i)}, {sr(S_DELTA)}, {vr(V_XA+i)}")
    a(f"s_add_u32 {sr(S_STG)}, {sr(S_STG)}, 1")
    a(f"s_cmp_eq_u32 {sr(S_STG)}, 10")
    a("s_waitcnt lgkmcnt(0)"); a.lgkm = []
    a(f"s_cbranch_scc1 L_ge_{tag}")
    a("s_barrier")
    g_reads(0)
    g_mfmas(2, isv)
    g_reads(1)
    g_mfmas(3, isv)
    a(f"s_branch L_gl_{tag}")
    a.label(f"L_ge_{tag}")
    a.lgkm = []
    g_mfmas(2, isv)
    g_mfmas(3, isv)
    g_epilogue(isv, tag)
    stamp(2)
    a("s_branch L_attn")

RB = 122880
S_LO, S_HI, S_VM, S_NINF = 64, 66, 68, 70
S_T, S_LIM, S_FB, S_DM = 56, 57, 58, 59
S_IT = 54
S_DL = 55
S_QOFF = 60
S_OB = 61
S_KLO, S_KHI, S_WIN, S_PASS = 73, 74, 75, 76
V_L16, V_AK, V_AT, V_AV = 1, 2, 3, 4
V_BK, V_BT, V_BV = 5, 8, 11
V_OA, V_OT = 14, 15
V_T = 16
QA, QB = 24, 32
V_A1, V_BM = 42, 216
P = 44
SB = [52, 68]
O = 84
CM = 100
KB = [116, 126]
VB = 136
CD, CF, C0 = 168, 184, 200
V_Q16 = 218
MOFF = 63.0
bulk = (lambda: OPT.get('bulk_sc1', 1))

def m16(d, A, B, C):
    a(f"v_mfma_f32_32x32x16_bf16 {vr(d,16)}, {vr(A,4)}, {vr(B,4)}, {C if isinstance(C,str) else vr(C,16)}")
def m8(d, A, B, C):
    a(f"v_mfma_f32_32x32x8_bf16 {vr(d,16)}, {vr(A,2)}, {vr(B,2)}, {C if isinstance(C,str) else vr(C,16)}")

def at_setup():
    t = V_T
    a(f"s_lshl_b32 {sr(S_T)}, {sr(S_QB)}, 3")
    a(f"s_add_u32 {sr(S_T)}, {sr(S_T)}, {sr(S_W)}")
    a(f"s_mov_b32 {sr(S_LO)}, -1"); a(f"s_mov_b32 {sr(S_LO+1)}, 0")
    a(f"s_mov_b32 {sr(S_HI)}, 0"); a(f"s_mov_b32 {sr(S_HI+1)}, -1")
    a(f"s_mov_b32 {sr(S_VM)}, 0xfffff"); a(f"s_mov_b32 {sr(S_VM+1)}, 0xfffff")
    a(f"s_mov_b32 {sr(S_NINF)}, 0xff800000"); a(f"s_mov_b32 {sr(S_NINF+1)}, 0xff800000")
    a(f"v_lshlrev_b32 {vr(V_L16)}, 4, v0")
    a(f"v_and_b32 {vr(V_Q16)}, 0x1f0, {vr(V_L16)}")
    a(f"v_lshrrev_b32 {vr(t+1)}, 5, v0")
    a(f"v_mov_b32 {vr(V_AK)}, {vr(V_L16)}")
    a(f"v_lshl_add_u32 {vr(V_AT)}, {vr(t+1)}, 3, {vr(V_Q16)}")
    a(f"v_add_u32 {vr(V_AT)}, 2048, {vr(V_AT)}")
    a(f"v_mul_u32_u24 {vr(V_AV)}, 320, {vr(t+1)}")
    a(f"v_add_u32 {vr(V_AV)}, {vr(V_AV)}, {vr(V_Q16)}")
    a(f"v_add_u32 {vr(V_AV)}, 2560, {vr(V_AV)}")
    for c in range(3):
        if c == 0: a(f"s_mov_b32 {sr(S_T0)}, {sr(S_W)}")
        elif c == 1: a(f"s_add_u32 {sr(S_T0)}, {sr(S_W)}, 1")
        else:
            a(f"s_cmp_eq_u32 {sr(S_T)}, 0")
            a(f"s_addc_u32 {sr(S_T0)}, {sr(S_W)}, 7")
        a(f"s_lshr_b32 {sr(S_T1)}, {sr(S_T0)}, 1")
        a(f"s_mul_i32 {sr(S_T1)}, {sr(S_T1)}, 5120")
        a(f"s_add_u32 {sr(S_T1)}, {sr(S_T1)}, {RB}")
        a(f"s_and_b32 {sr(S_T0)}, {sr(S_T0)}, 1")
        a(f"v_add_u32 {vr(V_BT+c)}, {sr(S_T1)}, {vr(V_AT)}")
        a(f"s_lshl_b32 {sr(S_T2)}, {sr(S_T0)}, 10")
        a(f"s_add_u32 {sr(S_T2)}, {sr(S_T2)}, {sr(S_T1)}")
        a(f"v_add_u32 {vr(V_BK+c)}, {sr(S_T2)}, {vr(V_L16)}")
        a(f"s_mul_i32 {sr(S_T2)}, {sr(S_T0)}, 1280")
        a(f"s_add_u32 {sr(S_T2)}, {sr(S_T2)}, {sr(S_T1)}")
        a(f"v_add_u32 {vr(V_BV+c)}, {sr(S_T2)}, {vr(V_AV)}")
    a(f"s_cmp_eq_u32 {sr(S_T)}, 0")
    a(f"s_cselect_b32 {sr(S_T0)}, {sr(S_NINF)}, 0")
    a(f"v_mov_b32 {vr(t+2)}, {sr(S_T0)}")
    a(f"s_cmp_eq_u32 {sr(S_QB)}, 0")
    a(f"s_cselect_b32 {sr(S_T0)}, {sr(S_NINF)}, 0")
    a(f"v_mov_b32 {vr(t+3)}, {sr(S_T0)}")
    a(f"s_max_u32 {sr(S_LIM)}, {sr(S_W)}, 1")
    a(f"s_add_u32 {sr(S_LIM)}, {sr(S_LIM)}, 1")
    a(f"s_cmp_eq_u32 {sr(S_QB)}, 0")
    a(f"s_cselect_b32 {sr(S_LIM)}, {sr(S_LIM)}, 99")
    a(f"v_mov_b32 {vr(t+4)}, {sr(S_NINF)}")
    a(f"v_mov_b32 {vr(t+5)}, 0")
    for i in range(16):
        r0 = 8 * (i // 4) + i % 4
        a(f"s_mov_b32 vcc_lo, {(0xffffffff << r0) & 0xffffffff:#x}")
        a(f"s_mov_b32 vcc_hi, {(0xffffffff << (r0 + 4)) & 0xffffffff:#x}")
        a(f"v_cndmask_b32 {vr(CD+i)}, {vr(t+4)}, {vr(t+2)}, vcc")
        a(f"v_cndmask_b32 {vr(CF+i)}, {vr(t+3)}, {vr(t+4)}, vcc")
        a(f"v_cndmask_b32 {vr(C0+i)}, {vr(t+2)}, {vr(t+5)}, vcc")
    a(f"s_mov_b32 {sr(S_T0)}, 0x3f803f80"); a(f"s_mov_b32 {sr(S_T1)}, 0x3f803f80")
    for i in range(16):
        a(f"v_mov_b64 {vr(VB+2*i,2)}, {sr(S_T0,2)}")
    for r in (QA + 4, QA + 6, QB + 4, QB + 6, QB + 8, V_A1, V_BM):
        a(f"v_mov_b64 {vr(r,2)}, 0")
    a(f"s_mov_b64 exec, {sr(S_LO,2)}")
    a(f"v_mov_b32 {vr(V_A1)}, 0x3f80")
    a("s_mov_b64 exec, -1")
    a(f"v_bfe_u32 {vr(t+2)}, v0, 4, 1")
    a(f"v_mul_u32_u24 {vr(t+2)}, 20480, {vr(t+2)}")
    a(f"v_and_b32 {vr(t+3)}, 0xf0, {vr(V_L16)}")
    a(f"s_mul_i32 {sr(S_T0)}, {sr(S_T)}, 40960")
    a(f"v_add3_u32 {vr(t+2)}, {vr(t+2)}, {vr(t+3)}, {sr(S_T0)}")
    a(f"s_lshl_b32 {sr(S_T0)}, {sr(S_HEAD)}, 9")
    a(f"v_lshl_add_u32 {vr(V_OA)}, {vr(t+1)}, 8, {vr(t+2)}")
    a(f"v_add_u32 {vr(V_OA)}, {sr(S_T0)}, {vr(V_OA)}")
    a(f"s_lshr_b32 {sr(S_T0)}, {sr(S_HEAD)}, 3")
    a(f"s_lshl_b32 {sr(S_T0)}, {sr(S_T0)}, 10")
    a(f"s_and_b32 {sr(S_T1)}, {sr(S_HEAD)}, 3")
    a(f"s_lshl_b32 {sr(S_T1)}, {sr(S_T1)}, 8")
    a(f"s_add_u32 {sr(S_T0)}, {sr(S_T0)}, {sr(S_T1)}")
    a(f"s_and_b32 {sr(S_T1)}, {sr(S_HEAD)}, 4")
    a(f"s_lshl_b32 {sr(S_T1)}, {sr(S_T1)}, 1")
    a(f"s_add_u32 {sr(S_T0)}, {sr(S_T0)}, {sr(S_T1)}")
    a(f"s_add_u32 {sr(S_T0)}, {sr(S_T0)}, 16384")
    a(f"v_add_u32 {vr(V_OT)}, {sr(S_T0)}, {vr(t+2)}")
    a(f"s_mul_i32 {sr(S_QOFF)}, {sr(S_HEAD)}, {QH}")
    a(f"s_lshr_b32 {sr(S_T0)}, {sr(S_T)}, 1")
    a(f"s_mul_i32 {sr(S_T0)}, {sr(S_T0)}, 2560")
    a(f"s_add_u32 {sr(S_QOFF)}, {sr(S_QOFF)}, {sr(S_T0)}")
    a(f"s_add_u32 {sr(S_QOFF)}, {sr(S_QOFF)}, {QOFF}")
    a(f"s_lshl_b32 {sr(S_DL)}, {sr(S_W)}, 10")

def q_soff(p):
    a(f"s_and_b32 {sr(S_T2)}, {sr(S_T)}, 1")
    a(f"s_lshl_b32 {sr(S_T0)}, {sr(S_T2)}, 10")
    a(f"s_add_u32 {sr(S_T0)}, {sr(S_T0)}, {sr(S_QOFF)}")
    a(f"s_lshl_b32 {sr(S_T1)}, {sr(S_T2)}, 3")
    a(f"s_add_u32 {sr(S_T1)}, {sr(S_T1)}, {sr(S_QOFF)}")
    if isinstance(p, int):
        if p:
            a(f"s_add_u32 {sr(S_T0)}, {sr(S_T0)}, {PSTRIDE}")
            a(f"s_add_u32 {sr(S_T1)}, {sr(S_T1)}, {PSTRIDE}")
    else:
        a(f"s_add_u32 {sr(S_T0)}, {sr(S_T0)}, {p}")
        a(f"s_add_u32 {sr(S_T1)}, {sr(S_T1)}, {p}")

def a_dma(tag=None):
    a(f"s_mov_b32 m0, {sr(S_DL)}")
    a(f"s_add_u32 {sr(S_DM)}, {sr(S_DL)}, {sr(S_KVOFF)}")
    dma(V_L16, SRD_WS, S_DM, sc1=bulk(), tag=tag)
    a(f"s_add_u32 {sr(S_DL)}, {sr(S_DL)}, 8192")

def standin(X):
    t = V_T
    a(f"v_max3_f32 {vr(t)}, {vr(X)}, {vr(X+1)}, {vr(X+2)}")
    a(f"v_max3_f32 {vr(t+1)}, {vr(X+3)}, {vr(X+4)}, {vr(X+5)}")
    a(f"v_max3_f32 {vr(t+2)}, {vr(X+6)}, {vr(X+7)}, {vr(X+8)}")
    a(f"v_max3_f32 {vr(t+3)}, {vr(X+9)}, {vr(X+10)}, {vr(X+11)}")
    a(f"v_max3_f32 {vr(t)}, {vr(t)}, {vr(X+12)}, {vr(X+13)}")
    a(f"v_max3_f32 {vr(t+1)}, {vr(t+1)}, {vr(X+14)}, {vr(X+15)}")
    a(f"v_max3_f32 {vr(t)}, {vr(t)}, {vr(t+2)}, {vr(t+3)}")
    a(f"v_max_f32 {vr(t)}, {vr(t)}, {vr(t+1)}")
    a(f"v_mov_b32 {vr(t+1)}, {vr(t)}")
    a("s_nop 1")
    a(f"v_permlane32_swap_b32 {vr(t)}, {vr(t+1)}")
    a("s_nop 1")
    a(f"v_max_f32 {vr(t)}, {vr(t)}, {vr(t+1)}")
    a(f"v_sub_f32 {vr(t)}, {f32(-MOFF)}, {vr(t)}")
    a(f"v_cvt_pk_bf16_f32 {vr(V_BM)}, {vr(t)}, {vr(t)}")
    a("s_nop 1")

def slot(X, Y, nxt, v1, v0, pre=None, mid=None, o_c=None):
    e = lambda i: a(f"v_exp_f32 {vr(X+i)}, {vr(X+i)}")
    c = lambda i: a(f"v_cvt_pk_bf16_f32 {vr(P+i)}, {vr(X+2*i)}, {vr(X+2*i+1)}")
    if pre: pre()
    if nxt:
        a.wait_lgkm(nxt[5])
        m8(Y, nxt[0], nxt[1], nxt[2])
    for i in range(5): e(i)
    if v1 is not None: m16(O, v1, P + 4, O)
    for i in range(5, 8): e(i)
    for i in range(4): c(i)
    if nxt: m16(Y, nxt[3], nxt[4], Y)
    if mid: mid()
    for i in range(8, 13): e(i)
    a.wait_lgkm(v0[1])
    m16(O, v0[0], P, O if o_c is None else o_c)
    for i in range(13, 16): e(i)
    for i in range(4, 8): c(i)

def vreads(dst, addr, offs, tag):
    a(f"s_mov_b64 exec, {sr(S_VM,2)}")
    for n, off in enumerate(offs):
        a.ds(f"ds_read_b128 {vr(dst+4*n,4)}, {vr(addr)} offset:{off}", tag)
    a("s_mov_b64 exec, -1")

def finalize(p):
    t = V_T
    a("s_nop 7"); a("s_nop 3")
    a(f"v_rcp_f32 {vr(t)}, {vr(O+12)}")
    a(f"v_mul_f32 {vr(t+1)}, {f32(2.0**28)}, {vr(O+12)}")
    a(f"v_mul_f32 {vr(t+2)}, {f32(2.0**28)}, {vr(t)}")
    a(f"v_mul_f32 {vr(t+1)}, 0, {vr(t+1)}")
    a(f"v_mul_f32 {vr(t+2)}, 0, {vr(t+2)}")
    for i in range(12):
        a(f"v_fma_f32 {vr(t+1+i%2)}, {vr(O+i)}, 0, {vr(t+1+i%2)}")
    a(f"v_cmp_u_f32 vcc, {vr(t+1)}, {vr(t+2)}")
    a(f"s_mov_b32 {sr(S_FB)}, {p}")
    a("s_nop 3")
    a("s_cbranch_vccnz L_fallback")
    a.label(f"L_fin{p}")
    for i in range(12):
        a(f"v_mul_f32 {vr(O+i)}, {vr(t)}, {vr(O+i)}")
    for i in range(6):
        a(f"v_cvt_pk_bf16_f32 {vr(P+i)}, {vr(O+2*i)}, {vr(O+2*i+1)}")
    a(f"s_mov_b32 {sr(S_OB)}, {OOFF + p*OSTRIDE}")
    a.vmem(f"buffer_store_dwordx4 {vr(P,4)}, {vr(V_OA)}, {sr(SRD_WS,4)}, {sr(S_OB)} offen sc1", 'ost')
    a(f"s_mov_b64 exec, {sr(S_LO,2)}")
    a.vmem(f"buffer_store_dwordx2 {vr(P+4,2)}, {vr(V_OT)}, {sr(SRD_WS,4)}, {sr(S_OB)} offen sc1", 'ost')
    a("s_mov_b64 exec, -1")

def o_flag(p):
    t = V_T
    a(f"s_lshr_b32 {sr(S_T0)}, {sr(S_T)}, 1")
    a(f"s_lshl_b32 {sr(S_T0)}, {sr(S_T0)}, 9")
    a(f"s_lshl_b32 {sr(S_T1)}, {sr(S_HEAD)}, 4")
    a(f"s_add_u32 {sr(S_T0)}, {sr(S_T0)}, {sr(S_T1)}")
    a(f"s_and_b32 {sr(S_T1)}, {sr(S_T)}, 1")
    a(f"s_lshl_b32 {sr(S_T1)}, {sr(S_T1)}, 3")
    a(f"s_add_u32 {sr(S_T0)}, {sr(S_T0)}, {sr(S_T1)}")
    a(f"s_add_u32 {sr(S_T0)}, {sr(S_T0)}, {FLAGS + (1+p)*FLSTRIDE}")
    a(f"v_mov_b64 {vr(t,2)}, {sr(S_NONCE,2)}")
    a("s_mov_b64 exec, 1")
    a(f"buffer_store_dwordx2 {vr(t,2)}, {vr(V_L16)}, {sr(SRD_WS,4)}, {sr(S_T0)} offen sc1")
    a("s_mov_b64 exec, -1")

OOL = []

def at_b():
    def cls(s):
        if s == 0: return 2, 0
        i = 0 if s == 1 else s
        return (0, ((8 - i) // 2) * 5120) if i % 2 == 0 else (1, ((7 - i) // 2) * 5120)
    def kread(s):
        c, off = cls(s); kb = KB[s % 2]
        a.ds(f"ds_read_b64 {vr(kb+8,2)}, {vr(V_BT+c)} offset:{off}", ('k', s))
        a.ds(f"ds_read_b128 {vr(kb,4)}, {vr(V_BK+c)} offset:{off}", ('k', s))
    def vread(s):
        c, off = cls(s)
        vreads(VB + 8 * (s % 4), V_BV + c, [off, off + 640], ('v', s))
    qt = lambda s: QB + 4 + 2 * cls(s)[0]
    a.lgkm = []
    kread(0); kread(1); vread(0)
    a.wait_lgkm(('k', 0))
    m8(SB[0], KB[0] + 8, qt(0), C0)
    m16(SB[0], KB[0], QB, SB[0])
    a("s_nop 7"); a("s_nop 3")
    standin(SB[0])
    m8(SB[0], V_A1, V_BM, SB[0])
    m8(CD, V_A1, V_BM, CD)
    m8(CM, V_A1, V_BM, "0")
    m8(CF, V_A1, V_BM, CF)
    a("s_nop 6")
    ndma = [2, 2, 2, 2, 2, 2, 1, 1, 1]
    for s in range(9):
        def pre(s=s):
            if s + 2 <= 8: kread(s + 2)
            if s + 1 <= 8: vread(s + 1)
            if 2 <= s + 1 <= 7:
                a(f"s_cmp_eq_u32 {sr(S_LIM)}, {s+1}")
                a(f"s_cbranch_scc1 L_lim{s+1}")
                a.label(f"L_limr{s+1}")
                def ool(s=s):
                    a.label(f"L_lim{s+1}")
                    a("s_nop 7"); a("s_nop 3")
                    for i in range(8): a(f"v_mov_b64 {vr(CM+2*i,2)}, {sr(S_NINF,2)}")
                    a("s_nop 1")
                    a(f"s_branch L_limr{s+1}")
                OOL.append(ool)
        def mid(s=s):
            for n in range(ndma[s]): a_dma('ad')
        nxt = None
        if s < 8:
            n = s + 1
            nxt = (KB[n % 2] + 8, qt(n), CD if n == 1 else CF if n == 8 else CM, KB[n % 2], QB, ('k', n))
        slot(SB[s % 2], SB[(s + 1) % 2], nxt, None if s == 0 else VB + 8 * ((s - 1) % 4) + 4,
             (VB + 8 * (s % 4), ('v', s)), pre, mid, "0" if s == 0 else None)
    a("s_nop 1")
    m16(O, VB + 8 * (8 % 4) + 4, P + 4, O)
    finalize(1)

def at_a():
    def kread(u, tag):
        kb = KB[u % 2]
        a.ds(f"ds_read_b64 {vr(kb+8,2)}, {vr(V_AT)} offset:{u*5120}", tag)
        a.ds(f"ds_read_b128 {vr(kb,4)}, {vr(V_AK)} offset:{u*5120}", tag)
        a.ds(f"ds_read_b128 {vr(kb+4,4)}, {vr(V_AK)} offset:{u*5120+1024}", tag)
    def vread(u, tag):
        vreads(VB + 16 * (u % 2), V_AV, [u * 5120 + o for o in (0, 640, 1280, 1920)], tag)
    a.lgkm = []
    kread(0, ('k', 0)); vread(0, ('v', 0))
    for i in range(8): a(f"v_mov_b64 {vr(O+2*i,2)}, 0")
    a(f"v_mov_b64 {vr(P+4,2)}, 0"); a(f"v_mov_b64 {vr(P+6,2)}, 0")
    a.wait_lgkm(('k', 0))
    m8(SB[0], KB[0] + 8, QA + 4, "0")
    m16(SB[0], KB[0], QA, SB[0])
    a("s_nop 7"); a("s_nop 3")
    standin(SB[0])
    m8(CM, V_A1, V_BM, "0")
    m8(SB[0], V_A1, V_BM, SB[0])
    a(f"s_mov_b32 {sr(S_IT)}, 0")
    a("s_nop 7")
    st0 = list(a.lgkm)
    a.label("L_aloop")
    l0 = len(a.lines)
    for u in range(4):
        kb, kn = KB[u % 2], KB[(u + 1) % 2]
        vb, vp = VB + 16 * (u % 2), VB + 16 * ((u + 1) % 2)
        def pre0(u=u):
            kread(u + 1, ('k', (u + 1) % 4))
            if u == 3:
                pass
        def mid0(u=u):
            if u == 3:
                a(f"v_add_u32 {vr(V_AK)}, {sr(S_DM)}, {vr(V_AK)}")
                a(f"v_add_u32 {vr(V_AT)}, {sr(S_DM)}, {vr(V_AT)}")
        def pre1(u=u):
            vread(u + 1, ('v', (u + 1) % 4))
        def mid1(u=u):
            if u == 3:
                a(f"v_add_u32 {vr(V_AV)}, {sr(S_DM)}, {vr(V_AV)}")
        slot(SB[0], SB[1], (kb + 8, QA + 6, CM, kb + 4, QA, ('k', u)), vp + 12, (vb, ('v', u)), pre0, mid0)
        slot(SB[1], SB[0], (kn + 8, QA + 4, CM, kn, QA, ('k', (u + 1) % 4)), vb + 4, (vb + 8, ('v', u)), pre1, mid1)
    a(f"s_add_u32 {sr(S_IT)}, {sr(S_IT)}, 1")
    a(f"s_cmp_eq_u32 {sr(S_IT)}, 2")
    a("s_cbranch_scc1 L_ahook2")
    a.label("L_ahookr")
    a(f"s_cmp_lt_u32 {sr(S_IT)}, 8")
    a("s_cbranch_scc1 L_aloop")
    assert a.lgkm == st0, (a.lgkm, st0)
    body = a.lines[l0:]
    errs = check_hazards(body + body)
    assert not errs
    def hook2():
        a.label("L_ahook2")
        a("s_waitcnt vmcnt(0)")
        o_flag(1)
        a("s_barrier")
        a("s_branch L_ahookr")
    OOL.append(hook2)
    a("s_nop 1")
    m16(O, VB + 16 + 12, P + 4, O)
    a("s_waitcnt lgkmcnt(0)"); a.lgkm = []
    finalize(0)

def fallback():
    t = V_T
    FQ, FQT = C0, C0 + 4
    X = SB[0]; kb = KB[0]
    vm, vq, vd, vav = t + 1, t + 2, t + 3, t + 4
    a.label("L_fallback")
    a("s_waitcnt vmcnt(0) lgkmcnt(0)")
    a(f"s_cmp_eq_u32 {sr(S_FB)}, 1")
    a(f"s_cselect_b32 {sr(S_T3)}, {PSTRIDE}, 0")
    a(f"s_cselect_b32 {sr(S_WIN)}, 256, -1")
    a(f"s_cselect_b32 {sr(S_KHI)}, {sr(S_T)}, 63")
    a(f"s_cselect_b32 {sr(S_KLO)}, {sr(S_T)}, 0")
    a(f"s_cselect_b32 {sr(S_T4)}, 0, 4096")
    a(f"s_max_u32 {sr(S_KLO)}, {sr(S_KLO)}, 8")
    a(f"s_sub_u32 {sr(S_KLO)}, {sr(S_KLO)}, 8")
    q_soff(sr(S_T3))
    a(f"s_add_u32 {sr(S_T3)}, {sr(S_T3)}, {sr(S_KVOFF)}")
    a(f"v_mov_b64 {vr(FQT,2)}, 0")
    a(f"buffer_load_dwordx4 {vr(FQ,4)}, {vr(V_L16)}, {sr(SRD_WS,4)}, {sr(S_T0)} offen sc1")
    a(f"s_mov_b64 exec, {sr(S_LO,2)}")
    a(f"buffer_load_dwordx2 {vr(FQT,2)}, {vr(V_Q16)}, {sr(SRD_WS,4)}, {sr(S_T1)} offen offset:2048 sc1")
    a("s_mov_b64 exec, -1")
    a(f"v_lshrrev_b32 {vr(vd)}, 5, v0")
    a(f"v_mul_u32_u24 {vr(vav)}, 320, {vr(vd)}")
    a(f"v_add_u32 {vr(vav)}, {vr(vav)}, {vr(V_Q16)}")
    a(f"v_lshlrev_b32 {vr(vd)}, 2, {vr(vd)}")
    a(f"v_and_b32 {vr(vq)}, 31, v0")
    a(f"v_sub_u32 {vr(vq)}, {vr(vq)}, {vr(vd)}")
    a(f"s_lshl_b32 {sr(S_T0)}, {sr(S_T)}, 5")
    a(f"s_add_u32 {sr(S_T0)}, {sr(S_T0)}, {sr(S_T4)}")
    a(f"v_add_u32 {vr(vq)}, {sr(S_T0)}, {vr(vq)}")
    a(f"v_mov_b32 {vr(vm)}, {sr(S_NINF)}")
    a(f"v_mov_b32 {vr(t+6)}, {sr(S_NINF)}")
    for i in range(8): a(f"v_mov_b64 {vr(O+2*i,2)}, 0")
    a(f"s_mov_b32 {sr(S_PASS)}, 0")
    a.label("L_fb_pass")
    a(f"s_mov_b32 {sr(S_T5)}, {sr(S_KLO)}")
    a.label("L_fb_loop")
    a(f"s_lshr_b32 {sr(S_T0)}, {sr(S_T5)}, 1")
    a(f"s_mul_i32 {sr(S_T0)}, {sr(S_T0)}, 5120")
    a(f"s_add_u32 {sr(S_T0)}, {sr(S_T0)}, {sr(S_T3)}")
    a(f"s_and_b32 {sr(S_T4)}, {sr(S_T5)}, 1")
    a(f"s_lshl_b32 {sr(S_T1)}, {sr(S_T4)}, 10")
    a(f"s_add_u32 {sr(S_T1)}, {sr(S_T1)}, {sr(S_T0)}")
    a(f"buffer_load_dwordx4 {vr(kb,4)}, {vr(V_L16)}, {sr(SRD_WS,4)}, {sr(S_T1)} offen sc1")
    a(f"s_lshl_b32 {sr(S_T1)}, {sr(S_T4)}, 3")
    a(f"s_add_u32 {sr(S_T1)}, {sr(S_T1)}, {sr(S_T0)}")
    a(f"buffer_load_dwordx2 {vr(kb+8,2)}, {vr(V_Q16)}, {sr(SRD_WS,4)}, {sr(S_T1)} offen offset:2048 sc1")
    a(f"s_mul_i32 {sr(S_T1)}, {sr(S_T4)}, 1280")
    a(f"s_add_u32 {sr(S_T1)}, {sr(S_T1)}, {sr(S_T0)}")
    a(f"s_mov_b64 exec, {sr(S_VM,2)}")
    a(f"buffer_load_dwordx4 {vr(VB,4)}, {vr(vav)}, {sr(SRD_WS,4)}, {sr(S_T1)} offen offset:2560 sc1")
    a(f"buffer_load_dwordx4 {vr(VB+4,4)}, {vr(vav)}, {sr(SRD_WS,4)}, {sr(S_T1)} offen offset:3200 sc1")
    a("s_mov_b64 exec, -1")
    a(f"s_lshl_b32 {sr(S_T0)}, {sr(S_T5)}, 5")
    a(f"v_subrev_u32 {vr(vd)}, {sr(S_T0)}, {vr(vq)}")
    a("s_waitcnt vmcnt(0)")
    m8(X, kb + 8, FQT, "0")
    m16(X, kb, FQ, X)
    a("s_nop 7"); a("s_nop 3")
    for i in range(16):
        a(f"v_subrev_u32 {vr(t+5)}, {8*(i//4)+i%4}, {vr(vd)}")
        a(f"v_cmp_gt_u32 vcc, {sr(S_WIN)}, {vr(t+5)}")
        a("s_nop 1")
        a(f"v_cndmask_b32 {vr(X+i)}, {vr(t+6)}, {vr(X+i)}, vcc")
    a(f"s_cmp_eq_u32 {sr(S_PASS)}, 1")
    a("s_cbranch_scc1 L_fb_p1")
    for i in range(8):
        a(f"v_max3_f32 {vr(vm)}, {vr(vm)}, {vr(X+2*i)}, {vr(X+2*i+1)}")
    a("s_branch L_fb_next")
    a.label("L_fb_p1")
    for i in range(16): a(f"v_sub_f32 {vr(X+i)}, {vr(X+i)}, {vr(vm)}")
    for i in range(16): a(f"v_exp_f32 {vr(X+i)}, {vr(X+i)}")
    a("s_nop 0")
    for i in range(8): a(f"v_cvt_pk_bf16_f32 {vr(P+i)}, {vr(X+2*i)}, {vr(X+2*i+1)}")
    a("s_nop 1")
    m16(O, VB, P, O)
    m16(O, VB + 4, P + 4, O)
    a("s_nop 7"); a("s_nop 3")
    a.label("L_fb_next")
    a(f"s_add_u32 {sr(S_T5)}, {sr(S_T5)}, 1")
    a(f"s_cmp_le_u32 {sr(S_T5)}, {sr(S_KHI)}")
    a("s_cbranch_scc1 L_fb_loop")
    a(f"s_cmp_eq_u32 {sr(S_PASS)}, 1")
    a("s_cbranch_scc1 L_fb_done")
    a(f"v_mov_b32 {vr(t+5)}, {vr(vm)}")
    a("s_nop 1")
    a(f"v_permlane32_swap_b32 {vr(vm)}, {vr(t+5)}")
    a("s_nop 1")
    a(f"v_max_f32 {vr(vm)}, {vr(vm)}, {vr(t+5)}")
    a(f"s_mov_b32 {sr(S_PASS)}, 1")
    a("s_branch L_fb_pass")
    a.label("L_fb_done")
    if OPT.get('fbcount'):
        a(f"v_mov_b32 {vr(t+5)}, 1")
        a(f"v_mov_b32 {vr(t+6)}, 64")
        a("s_mov_b64 exec, 1")
        a(f"global_atomic_add {vr(t+6)}, {vr(t+5)}, {sr(S_DBG,2)}")
        a("s_mov_b64 exec, -1")
    a(f"v_rcp_f32 {vr(t)}, {vr(O+12)}")
    a(f"s_cmp_eq_u32 {sr(S_FB)}, 1")
    a("s_cbranch_scc1 L_fin1")
    a("s_branch L_fin0")


V_WD = 2
V_WM, V_WT = 7, 8
V_RD = 9
V_OS = 10
V_PF = 11
OF = 24
ACC = 64
WF = 88
S_WO, S_WL, S_OQ, S_OS = 73, 74, 75, 76
RED = 102400

def op_setup():
    t = V_T
    srd(SRD_X, S_AWO, 640 * 1280)
    srd(SRD_W, S_BWO, 640 * 1280)
    for i in range(5):
        a(f"v_add_u32 {vr(t)}, {64*i}, v0")
        a(f"v_mul_u32_u24 {vr(t+1)}, 205, {vr(t)}")
        a(f"v_lshrrev_b32 {vr(t+1)}, 11, {vr(t+1)}")
        a(f"v_mul_u32_u24 {vr(t+1)}, 1120, {vr(t+1)}")
        a(f"v_lshl_add_u32 {vr(V_WD+i)}, {vr(t)}, 4, {vr(t+1)}")
    a(f"s_mul_i32 {sr(S_WO)}, {sr(S_W)}, {80*1280}")
    a(f"s_mul_i32 {sr(S_T0)}, {sr(S_QB)}, 160")
    a(f"s_add_u32 {sr(S_WO)}, {sr(S_WO)}, {sr(S_T0)}")
    a(f"s_mul_i32 {sr(S_WL)}, {sr(S_W)}, 12800")
    a(f"s_lshr_b32 {sr(S_T1)}, {sr(S_W)}, 2")
    a(f"s_and_b32 {sr(S_T2)}, {sr(S_W)}, 3")
    a(f"s_mul_i32 {sr(S_T3)}, {sr(S_T1)}, 51200")
    a(f"v_bfe_u32 {vr(t)}, v0, 2, 2")
    a(f"v_and_b32 {vr(t+1)}, 3, v0")
    a(f"v_lshl_add_u32 {vr(t+1)}, {vr(t+1)}, 3, {sr(S_T3)}")
    a(f"v_lshrrev_b32 {vr(t+2)}, 4, v0")
    a(f"v_mul_u32_u24 {vr(t+3)}, 20, {vr(t+2)}")
    a(f"v_add3_u32 {vr(t+3)}, {vr(t+3)}, {vr(t)}, 16")
    a(f"v_mul_u32_u24 {vr(t+3)}, 160, {vr(t+3)}")
    a(f"v_add_u32 {vr(V_WT)}, {vr(t+3)}, {vr(t+1)}")
    a(f"v_lshrrev_b32 {vr(t+3)}, 5, v0")
    a(f"v_mul_u32_u24 {vr(t+3)}, 20, {vr(t+3)}")
    a(f"v_bfe_u32 {vr(t+4)}, v0, 4, 1")
    a(f"v_lshl_add_u32 {vr(t+3)}, {vr(t+4)}, 2, {vr(t+3)}")
    a(f"v_add_u32 {vr(t+3)}, {vr(t+3)}, {vr(t)}")
    a(f"v_mul_u32_u24 {vr(t+3)}, 160, {vr(t+3)}")
    a(f"v_add_u32 {vr(V_WM)}, {vr(t+3)}, {vr(t+1)}")
    a(f"s_mul_i32 {sr(S_T3)}, {sr(S_T2)}, 5120")
    a(f"s_add_u32 {sr(S_T3)}, {sr(S_T3)}, {RED}")
    a(f"v_add_u32 {vr(V_RD)}, {sr(S_T3)}, {vr(V_L16)}")
    a(f"v_and_b32 {vr(t+3)}, 15, v0")
    a(f"v_mul_u32_u24 {vr(t+3)}, 2560, {vr(t+3)}")
    a(f"v_lshl_add_u32 {vr(V_OS)}, {vr(t+2)}, 3, {vr(t+3)}")
    a(f"v_lshlrev_b32 {vr(V_PF)}, 3, v0")
    a(f"s_lshl_b32 {sr(S_T3)}, {sr(S_HEAD)}, 2")
    a(f"s_add_u32 {sr(S_T3)}, {sr(S_T3)}, {sr(S_T2)}")
    a(f"s_mul_i32 {sr(S_OS)}, {sr(S_T3)}, {16*2560}")
    a(f"s_add_u32 {sr(S_OS)}, {sr(S_OS)}, {sr(S_T0)}")
    a(f"s_mul_i32 {sr(S_OQ)}, {sr(S_T3)}, 20480")
    a(f"s_add_u32 {sr(S_OQ)}, {sr(S_OQ)}, {OOFF}")

def wo_dma(p, lo=0, hi=13, tag='wo'):
    s = SRD_W if p else SRD_X
    for i in range(lo, hi):
        a(f"s_add_u32 m0, {sr(S_WL)}, {1024*i}")
        a(f"s_add_u32 {sr(S_T0)}, {sr(S_WO)}, {(i//5)*40960}")
        if i == 12: a(f"s_mov_b64 exec, {sr(S_LO,2)}")
        dma(V_WD + i % 5, s, S_T0, tag=tag)
        if i == 12: a("s_mov_b64 exec, -1")

def wf_read(ks):
    f = WF + 20 * (ks % 8)
    for ct in range(5):
        for jj in range(2):
            if ks < 8: ad, off = V_WM, (40 * ks + 8 * jj) * 160 + 32 * ct
            else: ad, off = V_WT, (160 * (ks - 8) + 80 * jj) * 160 + 32 * ct
            a.ds(f"ds_read_b64_tr_b16 {vr(f+4*ct+2*jj,2)}, {vr(ad)} offset:{off}", ('w', ks))

def o_poll(p):
    a(f"s_cmp_lg_u32 {sr(S_W)}, 0")
    a(f"s_cbranch_scc1 L_onp{p}")
    a(f"s_lshl_b32 {sr(S_T2)}, {sr(S_HEAD)}, 9")
    a(f"s_add_u32 {sr(S_T2)}, {sr(S_T2)}, {FLAGS + (1+p)*FLSTRIDE}")
    poll_flags(f"L_opoll{p}", [V_PF], V_T, S_T2)
    a.label(f"L_onp{p}")

def o_loads(p):
    a(f"s_lshr_b32 {sr(S_T2)}, {sr(S_W)}, 2")
    a(f"s_lshl_b32 {sr(S_T0)}, {sr(S_T2)}, 13")
    a(f"s_add_u32 {sr(S_T0)}, {sr(S_T0)}, {sr(S_OQ)}")
    if p: a(f"s_add_u32 {sr(S_T0)}, {sr(S_T0)}, {OSTRIDE}")
    a(f"s_add_u32 {sr(S_T1)}, {sr(S_T0)}, 4096")
    a(f"s_lshl_b32 {sr(S_T2)}, {sr(S_T2)}, 11")
    a(f"s_add_u32 {sr(S_T2)}, {sr(S_T2)}, {sr(S_OQ)}")
    a(f"s_add_u32 {sr(S_T2)}, {sr(S_T2)}, {16384 + p*OSTRIDE}")
    for ks in range(10):
        a.vmem(f"buffer_load_dwordx4 {vr(OF+4*ks,4)}, {vr(V_L16)}, {sr(SRD_WS,4)}, {sr(S_T0 + ks//4)} offen offset:{(ks%4)*1024} sc1", ('o', ks))

def op_mm(p):
    for ks in range(10):
        a.wait_vm(('o', ks))
        if ks == 0:
            a("s_waitcnt lgkmcnt(0)"); a.lgkm = []
        a.wait_lgkm(('w', ks))
        f = WF + 20 * (ks % 8)
        for ct in range(5):
            acc = vr(ACC + 4 * ct, 4)
            a(f"v_mfma_f32_16x16x32_bf16 {acc}, {vr(f+4*ct,4)}, {vr(OF+4*ks,4)}, {'0' if ks == 0 else acc}")
        if ks < 2: wf_read(8 + ks)
    a(f"s_add_u32 {sr(S_T0)}, {sr(S_OS)}, {1280*p}")
    a(f"s_cmp_ge_u32 {sr(S_W)}, 4")
    a("s_nop 4")
    a(f"s_cbranch_scc1 L_ored{p}")
    for own, other in (((0, 1, 2), (3, 4)), ((3, 4), (0, 1, 2))):
        for ct in other:
            a(f"ds_write_b128 {vr(V_RD)}, {vr(ACC+4*ct,4)} offset:{ct*1024}")
        a("s_waitcnt lgkmcnt(0)")
        a("s_barrier")
        for ct in own:
            a.ds(f"ds_read_b128 {vr(OF+4*ct,4)}, {vr(V_RD)} offset:{ct*1024}", ('r', ct))
        for ct in own:
            a.wait_lgkm(('r', ct))
            for i in range(2):
                a(f"v_pk_add_f32 {vr(ACC+4*ct+2*i,2)}, {vr(ACC+4*ct+2*i,2)}, {vr(OF+4*ct+2*i,2)}")
            for i in range(2):
                a(f"v_cvt_pk_bf16_f32 {vr(ACC+4*ct+i)}, {vr(ACC+4*ct+2*i)}, {vr(ACC+4*ct+2*i+1)}")
            a(f"buffer_store_dwordx2 {vr(ACC+4*ct,2)}, {vr(V_OS)}, {sr(SRD_OUT,4)}, {sr(S_T0)} offen offset:{ct*32}")
        if own[0] == 0:
            a(f"s_branch L_odone{p}")
            a.label(f"L_ored{p}")
    a.label(f"L_odone{p}")

def finish_stamps(n):
    if not OPT['stamps']: return
    a("s_waitcnt lgkmcnt(0)")
    a(f"s_lshl_b32 {sr(S_T0)}, s2, 3")
    a(f"s_add_u32 {sr(S_T0)}, {sr(S_T0)}, {sr(S_W)}")
    a(f"s_lshl_b32 {sr(S_T0)}, {sr(S_T0)}, 7")
    a(f"s_add_u32 {sr(S_T0)}, {sr(S_T0)}, {STAMP}")
    a("v_mov_b32 v2, 0")
    a("s_mov_b64 exec, 1")
    for i in range(n):
        a(f"v_mov_b32 v4, {sr(S_ST+2*i)}")
        a(f"v_mov_b32 v5, {sr(S_ST+2*i+1)}")
        a(f"buffer_store_dwordx2 v[4:5], v2, {sr(SRD_WS,4)}, {sr(S_T0)} offen offset:{i*8}")
        a("s_nop 1")
    a("s_mov_b64 exec, -1")
    if OPT.get('trace'):
        a(f"s_lshl_b32 {sr(S_T0)}, s2, 3")
        a(f"s_add_u32 {sr(S_T0)}, {sr(S_T0)}, {sr(S_W)}")
        a(f"s_lshl_b32 {sr(S_T0)}, {sr(S_T0)}, 10")
        a(f"s_add_u32 {sr(S_T0)}, {sr(S_T0)}, {STAMP + 0x100000}")
        a("v_lshlrev_b32 v2, 2, v0")
        for i in range(4):
            a(f"buffer_store_dword v{250+i}, v2, {sr(SRD_WS,4)}, {sr(S_T0)} offen offset:{i*256}")

def sstamp(i):
    if OPT['stamps']:
        if OPT.get('cyc') and i in (5, 6): a(f"s_memtime {sr(S_ST + 2 * (i - 4), 2)}")
        stamp(i); a("s_waitcnt lgkmcnt(0)"); a.lgkm = []

TQB, TQA, V_PL = 220, 222, 224

def main():
    if OPT.get('trace'):
        for i in range(4): a(f"v_mov_b32 v{250+i}, 0")
    if OPT['stamps']:
        for i in range(20): a(f"s_mov_b32 {sr(S_ST+i)}, 0")
    prologue()
    a(f"s_cmp_ge_u32 {sr(S_W)}, 4")
    a("s_cbranch_scc1 L_loader")
    g_compute()
    g_loader()
    a.label("L_attn")
    a(f"s_mov_b64 {sr(S_NONCE,2)}, 0")
    a(f"s_cmp_ge_u32 {sr(S_Y)}, 30")
    a("s_cbranch_scc1 L_nn1")
    a(f"s_load_dwordx2 {sr(S_NONCE,2)}, {sr(S_DBG,2)}, 0")
    a.label("L_nn1")
    at_setup()
    a("s_waitcnt vmcnt(0)")
    a("s_barrier")
    a(f"s_cmp_lg_u32 {sr(S_W)}, 0")
    a("s_cbranch_scc1 L_nsig")
    a(f"s_cmp_ge_u32 {sr(S_Y)}, 30")
    a("s_cbranch_scc1 L_nsig")
    get_nonce("L_gn0", V_PL)
    a(f"s_lshl_b32 {sr(S_T0)}, {sr(S_CB)}, 4")
    a(f"s_add_u32 {sr(S_T0)}, {sr(S_T0)}, {sr(S_TB)}")
    a(f"s_lshl_b32 {sr(S_T0)}, {sr(S_T0)}, 3")
    a(f"s_add_u32 {sr(S_T0)}, {sr(S_T0)}, {sr(S_FL)}")
    signal_flag(V_PL, S_T0)
    a.label("L_nsig")
    a(f"s_cmp_lg_u32 {sr(S_W)}, 4")
    a("s_cbranch_scc1 L_npoll")
    get_nonce("L_gn1", V_PL)
    g_flag_addrs(V_PL, V_PL + 1, V_PL + 2)
    poll_flags("L_gpoll", [V_PL, V_PL + 1], V_PL + 2, S_FL)
    a.label("L_npoll")
    stamp(3)
    a("s_barrier")
    if OPT.get('stop_after') == 'g':
        finish_stamps(10); a.label("L_exit"); a("s_endpgm"); return
    a(f"s_load_dwordx2 {sr(S_NONCE,2)}, {sr(S_DBG,2)}, 0")
    a.vm = []
    q_soff(1)
    a.vmem(f"buffer_load_dwordx4 {vr(QB,4)}, {vr(V_L16)}, {sr(SRD_WS,4)}, {sr(S_T0)} offen sc1", 'q')
    a.vmem(f"buffer_load_dwordx2 {vr(TQB,2)}, {vr(V_Q16)}, {sr(SRD_WS,4)}, {sr(S_T1)} offen offset:2048 sc1", 'q')
    a(f"s_mul_i32 {sr(S_T2)}, {sr(S_QB)}, 20480")
    a(f"s_add_u32 {sr(S_T2)}, {sr(S_T2)}, {sr(S_DL)}")
    a(f"s_add_u32 {sr(S_T3)}, {sr(S_KVOFF)}, {PSTRIDE}")
    for n in (4, 3, 2, 1, 0):
        a(f"s_add_u32 m0, {sr(S_DL)}, {RB + 8192*n}")
        a(f"s_add_i32 {sr(S_T4)}, {sr(S_T2)}, {(8192*n - 20480) & 0xffffffff:#x}")
        a(f"s_max_i32 {sr(S_T4)}, {sr(S_T4)}, 0")
        a(f"s_add_u32 {sr(S_T4)}, {sr(S_T4)}, {sr(S_T3)}")
        dma(V_L16, SRD_WS, S_T4, sc1=bulk(), tag='b')
    a(f"s_sub_u32 {sr(S_T0)}, {sr(S_T0)}, {PSTRIDE}")
    a(f"s_sub_u32 {sr(S_T1)}, {sr(S_T1)}, {PSTRIDE}")
    a.vmem(f"buffer_load_dwordx4 {vr(QA,4)}, {vr(V_L16)}, {sr(SRD_WS,4)}, {sr(S_T0)} offen sc1", 'qa')
    a.vmem(f"buffer_load_dwordx2 {vr(TQA,2)}, {vr(V_Q16)}, {sr(SRD_WS,4)}, {sr(S_T1)} offen offset:2048 sc1", 'qa')
    get_nonce("L_gn2", V_PL)
    a.wait_vm('q')
    a(f"s_bitcmp1_b32 {sr(S_W)}, 0")
    a(f"s_cselect_b64 exec, {sr(S_HI,2)}, {sr(S_LO,2)}")
    a(f"v_mov_b64 {vr(QB+4,2)}, {vr(TQB,2)}")
    a("s_not_b64 exec, exec")
    a(f"v_mov_b64 {vr(QB+6,2)}, {vr(TQB,2)}")
    a(f"s_cmp_eq_u32 {sr(S_T)}, 0")
    a(f"s_cselect_b64 exec, {sr(S_LO,2)}, exec")
    a(f"v_mov_b64 {vr(QB+8,2)}, {vr(TQB,2)}")
    a("s_mov_b64 exec, -1")
    a.wait_vm('b')
    a("s_barrier")
    sstamp(4)
    at_b()
    a.wait_vm('ad')
    a(f"s_mov_b64 exec, {sr(S_LO,2)}")
    a(f"v_mov_b64 {vr(QA+4,2)}, {vr(TQA,2)}")
    a(f"s_mov_b64 exec, {sr(S_HI,2)}")
    a(f"v_mov_b64 {vr(QA+6,2)}, {vr(TQA,2)}")
    a("s_mov_b64 exec, -1")
    a("s_barrier")
    sstamp(5)
    for n in range(5): a_dma('ad')
    a(f"s_mov_b32 {sr(S_DM)}, 20480")
    at_a()
    a.vm = ['ost', 'ost']
    sstamp(6)
    op_setup()
    a("s_barrier")
    wo_dma(1)
    a.wait_vm('ost')
    o_flag(0)
    o_poll(1)
    a("s_waitcnt vmcnt(0)"); a.vm = []
    a("s_barrier")
    o_loads(1)
    for ks in range(8): wf_read(ks)
    op_mm(1)
    sstamp(7)
    wo_dma(0)
    o_poll(0)
    a("s_waitcnt vmcnt(0)"); a.vm = []
    a("s_barrier")
    sstamp(8)
    o_loads(0)
    for ks in range(8): wf_read(ks)
    op_mm(0)
    if OPT['stamps']:
        a("s_waitcnt vmcnt(0)")
        stamp(9)
    finish_stamps(10)
    a.label("L_exit")
    a("s_endpgm")
    for f in OOL: f()
    fallback()

main()
head = f"""; fused QKV projection + attention (full / sliding window) + output projection, one persistent launch
; @launch grid=(256,1,1) block=(512,1,1) lds=163840
.amdgcn_target "amdgcn-amd-amdhsa--gfx950"
.text
.globl {NAME}_kernel
.p2align 8
.type {NAME}_kernel,@function
{NAME}_kernel:
"""
tail = f""".section .rodata,"a"
.p2align 6
.amdhsa_kernel {NAME}_kernel
  .amdhsa_next_free_vgpr 256
  .amdhsa_next_free_sgpr 102
  .amdhsa_accum_offset 256
  .amdhsa_group_segment_fixed_size 0
  .amdhsa_kernarg_size 72
  .amdhsa_user_sgpr_count 2
  .amdhsa_user_sgpr_kernarg_segment_ptr 1
  .amdhsa_system_sgpr_workgroup_id_x 1
.end_amdhsa_kernel
"""
out = OPT.get('out', 'k.s')
open(out, 'w').write(head + a.text() + tail)
errs = check_hazards(a.lines)
print("lines", len(a.lines), "hazards", len(errs))
```

```python
import sys, math, struct
from asmlib import *

NAME = "concat_heads__softmax_full_mha__sliding_block__prompt"
OPT = dict(stamps=False, stop_after=None)
for arg in sys.argv[1:]:
    if '=' in arg:
        k, v = arg.split('='); OPT[k] = int(v) if v.lstrip('-').isdigit() else v

def f32(x):
    return "0x%08x" % struct.unpack('<I', struct.pack('<f', x))[0]

PSTRIDE = 0x800000
KVH = 163840
QOFF = 0x500000
QH = 81920
OOFF = 0x1000000
OSTRIDE = 0x280000
STAMP = 0x2000000
FLAGS = 0x1800000
NREP = OPT.get('nrep', 4)
REPSTRIDE = 2048 + 256
FLSTRIDE = 0x10000
QSCALE = 20 ** -0.5 * math.log2(math.e)

S_AX, S_AW, S_AWO, S_BX, S_BW, S_BWO, S_OUT, S_DBG, S_WS = 4, 6, 8, 10, 12, 14, 16, 18, 20
SRD_X, SRD_W, SRD_WS, SRD_OUT = 24, 28, 32, 36
S_W = 40
S_X = 41
S_Y = 42
S_CB, S_TB = 43, 44
S_HEAD, S_QB = 45, 46
S_T0, S_T1, S_T2, S_T3, S_T4, S_T5 = 48, 49, 50, 51, 52, 53
S_STG = 54
S_SLOT = 55
S_XOFF, S_WOFF = 56, 57
S_DELTA = 58
S_POFF2 = 59
S_SCALE = 60
S_POFF = 62
S_KVOFF = 63
S_M = 64
S_CNT = 72
S_C48K = 73
S_KC, S_XB, S_WB = 74, 75, 76
S_C640 = 77
S_NONCE = 78
S_FL = 47
S_ST = 80

a = Asm()

def stamp(i):
    if OPT['stamps']:
        if OPT.get('cyc') == 2 and i in (1, 2): a(f"s_memtime {sr(S_ST + 2 * (i + 4), 2)}")
        a(f"s_memrealtime {sr(S_ST + 2 * i, 2)}")

def trace(vreg, sidx):
    if OPT.get('trace'):
        a("s_memrealtime s[100:101]")
        a("s_waitcnt lgkmcnt(0)")
        a(f"s_mov_b32 m0, {sr(sidx)}")
        a(f"v_writelane_b32 {vr(vreg)}, s100, m0")
        if vreg == 252:
            a("s_memtime s[100:101]")
            a("s_waitcnt lgkmcnt(0)")
            a(f"v_writelane_b32 v253, s100, m0")

def srd(dst, ptr, size):
    a(f"s_mov_b32 {sr(dst)}, {sr(ptr)}")
    a(f"s_and_b32 {sr(dst+1)}, {sr(ptr+1)}, 0xffff")
    a(f"s_mov_b32 {sr(dst+2)}, {size}")
    a(f"s_mov_b32 {sr(dst+3)}, 0x00020000")

def get_nonce(lab, vt):
    a("s_waitcnt lgkmcnt(0)")
    a(f"s_cmp_lg_u64 {sr(S_NONCE,2)}, 0")
    a(f"s_cbranch_scc1 {lab}_done")
    a(f"v_mov_b32 {vr(vt)}, 0")
    a(f"s_mov_b32 {sr(S_CNT)}, 0x4000")
    a.label(lab)
    a(f"global_load_dwordx2 {vr(vt+2,2)}, {vr(vt)}, {sr(S_DBG,2)} sc1")
    a(f"s_sub_u32 {sr(S_CNT)}, {sr(S_CNT)}, 1")
    a("s_waitcnt vmcnt(0)")
    a(f"v_readfirstlane_b32 {sr(S_NONCE)}, {vr(vt+2)}")
    a(f"v_readfirstlane_b32 {sr(S_NONCE+1)}, {vr(vt+3)}")
    a(f"s_cmp_eq_u32 {sr(S_CNT)}, 0")
    a(f"s_cbranch_scc1 {lab}_done")
    a("s_sleep 8")
    a(f"s_cmp_eq_u64 {sr(S_NONCE,2)}, 0")
    a(f"s_cbranch_scc1 {lab}")
    a.label(lab + "_done")

def poll_flags(lab, vaddrs, vt, soff):
    a(f"s_mov_b32 {sr(S_CNT)}, 0x4000")
    a.label(lab)
    for i, va in enumerate(vaddrs):
        a(f"buffer_load_dwordx2 {vr(vt+2*i,2)}, {vr(va)}, {sr(SRD_WS,4)}, {sr(soff)} offen sc1")
    a(f"s_sub_u32 {sr(S_CNT)}, {sr(S_CNT)}, 1")
    a("s_waitcnt vmcnt(0)")
    a(f"v_cmp_ne_u64 vcc, {sr(S_NONCE,2)}, {vr(vt,2)}")
    for i in range(1, len(vaddrs)):
        a(f"v_cmp_ne_u64 {sr(S_T0,2)}, {sr(S_NONCE,2)}, {vr(vt+2*i,2)}")
        a("s_nop 0")
        a(f"s_or_b64 vcc, vcc, {sr(S_T0,2)}")
    a(f"s_cmp_eq_u32 {sr(S_CNT)}, 0")
    a(f"s_cbranch_scc1 {lab}_done")
    a("s_nop 2")
    a(f"s_cbranch_vccz {lab}_done")
    a(f"s_sleep {OPT.get('psleep', 8)}")
    a(f"s_branch {lab}")
    a.label(lab + "_done")

def signal_flag(vt, soff):
    a(f"v_mul_u32_u24 {vr(vt)}, {REPSTRIDE}, v0")
    a(f"v_mov_b32 {vr(vt+2)}, {sr(S_NONCE)}")
    a(f"v_mov_b32 {vr(vt+3)}, {sr(S_NONCE+1)}")
    a(f"s_mov_b64 exec, {(1 << NREP) - 1}")
    a(f"buffer_store_dwordx2 {vr(vt+2,2)}, {vr(vt)}, {sr(SRD_WS,4)}, {sr(soff)} offen sc1")
    a("s_mov_b64 exec, -1")

def g_flag_addr(v, t, p):
    a(f"v_bfe_u32 {vr(t)}, v0, 3, 1")
    a(f"v_mul_u32_u24 {vr(t)}, 19, {vr(t)}")
    a(f"s_mul_i32 {sr(S_T0)}, {sr(S_HEAD)}, 20")
    a(f"v_add_u32 {vr(t)}, {sr(S_T0)}, {vr(t)}")
    a(f"v_and_b32 {vr(t)}, 0xffffff80, {vr(t)}")
    a(f"s_and_b32 {sr(S_T0)}, {sr(S_QB)}, {NREP-1}")
    a(f"s_mul_i32 {sr(S_T0)}, {sr(S_T0)}, {REPSTRIDE}")
    if p: a(f"s_add_u32 {sr(S_T0)}, {sr(S_T0)}, 64")
    a(f"v_lshrrev_b32 {vr(t+1)}, 4, v0")
    a(f"v_min_u32 {vr(t+1)}, 2, {vr(t+1)}")
    a(f"v_mul_u32_u24 {vr(t+1)}, 640, {vr(t+1)}")
    a(f"v_add3_u32 {vr(t)}, {vr(t)}, {vr(t+1)}, {sr(S_T0)}")
    if p:
        a(f"v_and_b32 {vr(v)}, 1, v0")
        a(f"v_sub_u32 {vr(v)}, {sr(S_QB)}, {vr(v)}")
        a(f"v_max_i32 {vr(v)}, 0, {vr(v)}")
    else:
        a(f"v_and_b32 {vr(v)}, 7, v0")
        a("s_mov_b64 exec, 0xffff")
        a(f"v_mov_b32 {vr(v)}, {sr(S_QB)}")
        a("s_mov_b64 exec, -1")
    a(f"v_lshl_add_u32 {vr(v)}, {vr(v)}, 3, {vr(t)}")

def sb_arrive(word, t):
    a(f"v_mov_b32 {vr(t)}, {word if isinstance(word, str) else 4*word}")
    a(f"v_mov_b32 {vr(t+1)}, 1")
    a("s_mov_b64 exec, 1")
    a(f"ds_add_u32 {vr(t)}, {vr(t+1)}")
    a("s_mov_b64 exec, -1")

def sb_wait(lab, word, target, t):
    a(f"v_mov_b32 {vr(t)}, {word if isinstance(word, str) else 4*word}")
    a(f"s_mov_b32 {sr(S_CNT)}, 0x40000")
    a.label(lab)
    a(f"ds_read_b32 {vr(t+1)}, {vr(t)}")
    a(f"s_sub_u32 {sr(S_CNT)}, {sr(S_CNT)}, 1")
    a("s_waitcnt lgkmcnt(0)")
    a(f"v_readfirstlane_b32 {sr(S_T0)}, {vr(t+1)}")
    a(f"s_cbranch_scc1 {lab}_done")
    a(f"s_cmp_lt_u32 {sr(S_T0)}, {target}")
    a(f"s_cbranch_scc1 {lab}")
    a.label(lab + "_done")
    a.lgkm = []

def prologue():
    a("s_cmp_ge_u32 s2, 256")
    a("s_cbranch_scc1 L_exit")
    a(f"s_load_dwordx16 {sr(4,16)}, s[0:1], 0")
    a(f"s_load_dwordx2 {sr(S_WS,2)}, s[0:1], 64")
    stamp(0)
    a("v_lshrrev_b32 v1, 6, v0")
    a(f"s_and_b32 {sr(S_X)}, s2, 7")
    a(f"v_readfirstlane_b32 {sr(S_W)}, v1")
    a("v_and_b32 v0, 63, v0")
    a(f"s_lshr_b32 {sr(S_Y)}, s2, 3")
    a(f"s_and_b32 {sr(S_T0)}, {sr(S_X)}, 1")
    a(f"s_mul_i32 {sr(S_T0)}, {sr(S_T0)}, 30")
    a(f"s_add_u32 {sr(S_T0)}, {sr(S_T0)}, {sr(S_Y)}")
    a(f"s_lshr_b32 {sr(S_CB)}, {sr(S_T0)}, 2")
    a(f"s_and_b32 {sr(S_T0)}, {sr(S_T0)}, 3")
    a(f"s_lshr_b32 {sr(S_TB)}, {sr(S_X)}, 1")
    a(f"s_lshl_b32 {sr(S_TB)}, {sr(S_TB)}, 2")
    a(f"s_add_u32 {sr(S_TB)}, {sr(S_TB)}, {sr(S_T0)}")
    a(f"s_and_b32 {sr(S_T0)}, {sr(S_Y)}, 3")
    a(f"s_lshl_b32 {sr(S_HEAD)}, {sr(S_X)}, 2")
    a(f"s_add_u32 {sr(S_HEAD)}, {sr(S_HEAD)}, {sr(S_T0)}")
    a(f"s_lshr_b32 {sr(S_QB)}, {sr(S_Y)}, 2")
    a(f"s_mul_i32 {sr(S_KVOFF)}, {sr(S_HEAD)}, {KVH}")
    a(f"s_cmp_ge_u32 {sr(S_X)}, 4")
    a("s_waitcnt lgkmcnt(0)")
    a(f"s_cselect_b64 {sr(S_T0,2)}, {sr(S_BX,2)}, {sr(S_AX,2)}")
    a(f"s_cselect_b64 {sr(S_T2,2)}, {sr(S_BW,2)}, {sr(S_AW,2)}")
    a(f"s_cselect_b32 {sr(S_POFF)}, {PSTRIDE}, 0")
    srd(SRD_X, S_T0, 2048 * 1280)
    srd(SRD_W, S_T2, 640 * 3840)
    srd(SRD_WS, S_WS, 0x10000000)
    srd(SRD_OUT, S_OUT, 2048 * 2560)
    a(f"s_mov_b32 {sr(S_C640)}, 640")
    a(f"s_mov_b32 {sr(S_FL)}, {FLAGS}")
    a(f"s_or_b32 {sr(S_T0)}, s2, {sr(S_W)}")
    a(f"s_cmp_lg_u32 {sr(S_T0)}, 0")
    a("s_cbranch_scc1 L_nononce")
    a(f"s_memrealtime {sr(S_NONCE,2)}")
    a("v_mov_b32 v1, 0")
    a("s_waitcnt lgkmcnt(0)")
    a(f"s_or_b32 {sr(S_NONCE)}, {sr(S_NONCE)}, 1")
    a(f"v_mov_b32 v2, {sr(S_NONCE)}")
    a(f"v_mov_b32 v3, {sr(S_NONCE+1)}")
    a("s_mov_b64 exec, 1")
    a(f"global_store_dwordx2 v1, v[2:3], {sr(S_DBG,2)} sc1")
    a("s_mov_b64 exec, -1")
    a.label("L_nononce")
    if OPT.get('xcctest'):
        a(f"s_getreg_b32 {sr(S_T0)}, hwreg(HW_REG_XCC_ID, 0, 4)")
        a(f"s_cmp_eq_u32 {sr(S_T0)}, {sr(S_X)}")
        a("s_cbranch_scc1 L_xok")
        a("v_mov_b32 v1, 1"); a("v_mov_b32 v2, 16")
        a("s_mov_b64 exec, 1")
        a(f"global_atomic_add v2, v1, {sr(S_DBG,2)}")
        a("s_mov_b64 exec, -1")
        a(f"s_mov_b32 {sr(S_T0)}, 6")
        a.label("L_xsl")
        a("s_sleep 127")
        a(f"s_sub_u32 {sr(S_T0)}, {sr(S_T0)}, 1")
        a(f"s_cmp_lg_u32 {sr(S_T0)}, 0")
        a("s_cbranch_scc1 L_xsl")
        a.label("L_xok")
    a(f"s_cmp_ge_u32 {sr(S_Y)}, 30")
    a("s_cbranch_scc1 L_attn")

V_LX, V_LW = 2, 3
SLOT = 49152
NSLOT = 3

def dma(vaddr, srdr, soff, sc1=False, tag=None):
    s = f"buffer_load_dwordx4 {vr(vaddr)}, {sr(srdr,4)}, {sr(soff)} offen" + (" sc1" if sc1 else "") + " lds"
    if tag is None: a(s)
    else: a.vmem(s, tag)

def g_issue_stage():
    for j in range(4):
        for jj in range(2):
            a(f"s_add_u32 m0, {sr(S_SLOT)}, {(2*j+jj)*4096}")
            a(f"s_add_u32 {sr(S_T0)}, {sr(S_XOFF)}, {(2*j+jj)*40960}")
            dma(V_LX, SRD_X, S_T0)
        a(f"s_add_u32 m0, {sr(S_SLOT)}, {32768 + j*4096}")
        a(f"s_add_u32 {sr(S_T1)}, {sr(S_WOFF)}, {j*61440}")
        dma(V_LW, SRD_W, S_T1)
    a(f"s_add_u32 {sr(S_KC)}, {sr(S_KC)}, 1")
    a(f"s_cmp_eq_u32 {sr(S_KC)}, 10")
    a(f"s_cselect_b32 {sr(S_KC)}, 0, {sr(S_KC)}")
    a(f"s_lshl_b32 {sr(S_T0)}, {sr(S_KC)}, 7")
    a(f"s_add_u32 {sr(S_XOFF)}, {sr(S_XB)}, {sr(S_T0)}")
    a(f"s_mul_i32 {sr(S_T0)}, {sr(S_KC)}, 245760")
    a(f"s_add_u32 {sr(S_WOFF)}, {sr(S_WB)}, {sr(S_T0)}")
    a(f"s_add_u32 {sr(S_SLOT)}, {sr(S_SLOT)}, {SLOT}")
    a(f"s_cmp_ge_u32 {sr(S_SLOT)}, {SLOT*NSLOT}")
    a(f"s_cselect_b32 {sr(S_T0)}, {SLOT*NSLOT}, 0")
    a(f"s_sub_u32 {sr(S_SLOT)}, {sr(S_SLOT)}, {sr(S_T0)}")

def g_loader():
    a.label("L_loader")
    a(f"s_sub_u32 {sr(S_T2)}, {sr(S_W)}, 4")
    a(f"s_lshl_b32 {sr(S_SLOT)}, {sr(S_T2)}, 10")
    a("v_lshrrev_b32 v5, 3, v0")
    a(f"s_lshl_b32 {sr(S_T0)}, {sr(S_T2)}, 3")
    a(f"v_add_u32 v5, {sr(S_T0)}, v5")
    a("v_lshrrev_b32 v6, 1, v5")
    a("v_xor_b32 v6, v6, v0")
    a("v_and_b32 v6, 7, v6")
    a("v_lshlrev_b32 v6, 4, v6")
    a(f"v_mov_b32 v7, 1280")
    a(f"v_mad_u32_u24 {vr(V_LX)}, v5, v7, v6")
    a("v_lshrrev_b32 v5, 4, v0")
    a("v_lshlrev_b32 v6, 2, v5")
    a("v_xor_b32 v6, v6, v0")
    a("v_and_b32 v6, 15, v6")
    a("v_lshlrev_b32 v6, 4, v6")
    a(f"s_lshl_b32 {sr(S_T0)}, {sr(S_T2)}, 2")
    a(f"v_add_u32 v5, {sr(S_T0)}, v5")
    a(f"v_mov_b32 v7, 3840")
    a(f"v_mad_u32_u24 {vr(V_LW)}, v5, v7, v6")
    D = 2
    a(f"s_and_b32 {sr(S_T0)}, {sr(S_TB)}, 7")
    a(f"s_mul_i32 {sr(S_XB)}, {sr(S_T0)}, 327680")
    a(f"s_lshl_b32 {sr(S_WB)}, {sr(S_CB)}, 8")
    if OPT.get('rot', 1):
        a(f"s_mul_i32 {sr(S_T0)}, {sr(S_Y)}, 52")
        a(f"s_lshr_b32 {sr(S_T0)}, {sr(S_T0)}, 8")
        a(f"s_mul_i32 {sr(S_T0)}, {sr(S_T0)}, 5")
        a(f"s_sub_u32 {sr(S_KC)}, {sr(S_Y)}, {sr(S_T0)}")
        a(f"s_lshl_b32 {sr(S_KC)}, {sr(S_KC)}, 1")
    else:
        a(f"s_mov_b32 {sr(S_KC)}, 0")
    a(f"s_lshl_b32 {sr(S_T0)}, {sr(S_KC)}, 7")
    a(f"s_add_u32 {sr(S_XOFF)}, {sr(S_XB)}, {sr(S_T0)}")
    a(f"s_mul_i32 {sr(S_T0)}, {sr(S_KC)}, 245760")
    a(f"s_add_u32 {sr(S_WOFF)}, {sr(S_WB)}, {sr(S_T0)}")
    a(f"s_mov_b32 {sr(S_STG)}, 0")
    a.label("L_ld_loop")
    a(f"s_cmp_lt_u32 {sr(S_STG)}, {D}")
    a("s_cbranch_scc1 L_ld_nb")
    a(f"s_waitcnt vmcnt({(D-1)*12})")
    trace(250, S_STG)
    a("s_barrier")
    trace(251, S_STG)
    a.label("L_ld_nb")
    g_issue_stage()
    trace(252, S_STG)
    a(f"s_add_u32 {sr(S_STG)}, {sr(S_STG)}, 1")
    a(f"s_cmp_lt_u32 {sr(S_STG)}, 10")
    a("s_cbranch_scc1 L_ld_loop")
    a("s_waitcnt vmcnt(12)")
    trace(250, S_STG)
    a("s_barrier")
    a(f"s_add_u32 {sr(S_STG)}, {sr(S_STG)}, 1")
    a("s_waitcnt vmcnt(0)")
    trace(250, S_STG)
    a("s_barrier")

V_XA = 2
V_WA = 6
V_SA = 8
V_TMP = 16
V_F = 32
V_ACC = 128
V_PK = 32

def g_read_list(ks):
    f = V_F + 24 * ks
    L = []
    for T in range(2):
        for s2 in range(2):
            L.append(f"ds_read_b64_tr_b16 {vr(f+16+4*T+2*s2,2)}, {vr(V_WA+T)} offset:{ks*4096+s2*1024}")
        for tt in range(2):
            L.append(f"ds_read_b128 {vr(f+4*(2*T+tt),4)}, {vr(V_XA+ks)} offset:{(2*T+tt)*4096}")
    return L

def g_reads(ks):
    for l in g_read_list(ks): a.ds(l, ('f', ks))

def g_mfma(ks, t, isv):
    f = V_F + 24 * ks
    T, tt = t // 4, t % 4
    acc = vr(V_ACC + 16 * t, 16)
    x = vr(f + 4 * tt, 4); w = vr(f + 16 + 4 * T, 4)
    A, B = (x, w) if isv else (w, x)
    a(f"v_mfma_f32_32x32x16_bf16 {acc}, {A}, {B}, {acc}")

def g_mfmas(ks, isv, rd=None):
    L = g_read_list(rd) if rd is not None else []
    if not OPT.get('gil', 1):
        for l in L: a.ds(l, ('f', rd))
        L = []
    for t in range(8):
        g_mfma(ks, t, isv)
        if L: a.ds(L[t], ('f', rd))

def g_epi_pair(isv, sc, t0):
    G = []
    pk = lambda t: V_PK + 8 * (t % 4)
    for t in (t0, t0 + 1):
        acc = V_ACC + 16 * t
        T, tt = t // 4, t % 4
        so = S_POFF if tt < 2 else S_POFF2
        for i in range(8):
            g = []
            if sc:
                g.append(f"v_mul_f32 {vr(acc+2*i)}, {sr(S_SCALE)}, {vr(acc+2*i)}")
                g.append(f"v_mul_f32 {vr(acc+2*i+1)}, {sr(S_SCALE)}, {vr(acc+2*i+1)}")
            g.append(f"v_cvt_pk_bf16_f32 {vr(pk(t)+i)}, {vr(acc+2*i)}, {vr(acc+2*i+1)}")
            if isv and i % 4 == 3:
                j = i // 4
                g.append(f"buffer_store_dwordx4 {vr(pk(t)+4*j,4)}, {vr(V_SA+T)}, {sr(SRD_WS,4)}, {sr(so)} offen offset:{(tt%2)*1280+j*640} sc1")
            if not isv and t % 2 == 1 and i % 4 == 3:
                u = i // 4
                pa = pk(t - 1) + 4 * u
                pb = pk(t) + 4 * u
                g += [f"s_mov_b64 exec, {sr(S_M+2*(2*T+u),2)}",
                      f"v_swap_b32 {vr(pa+2)}, {vr(pb)}",
                      f"v_swap_b32 {vr(pa+3)}, {vr(pb+1)}",
                      "s_mov_b64 exec, -1",
                      f"buffer_store_dwordx4 {vr(pa,4)}, {vr(V_SA+2*(2*T+u))}, {sr(SRD_WS,4)}, {sr(so)} offen sc1",
                      f"buffer_store_dwordx4 {vr(pb,4)}, {vr(V_SA+2*(2*T+u)+1)}, {sr(SRD_WS,4)}, {sr(so)} offen sc1"]
            G.append(g)
    return G

def g_tail(isv, sc):
    for p in range(5):
        G = g_epi_pair(isv, sc, 2 * (p - 1)) if p else []
        M = [(2, 2 * p), (2, 2 * p + 1), (3, 2 * p), (3, 2 * p + 1)] if p < 4 else []
        if p == 4: a("s_nop 7"); a("s_nop 3")
        for n in range(4):
            if M: g_mfma(M[n][0], M[n][1], isv)
            if p and p < 4 and n == 0:
                a("s_nop 7")
                if p == 1: a("s_nop 1")
            for g in G[4 * n:4 * n + 4]:
                for l in g: a(l)
    a("s_nop 1")

def g_compute():
    t = V_TMP
    a(f"v_and_b32 {vr(t)}, 31, v0")
    a(f"v_lshrrev_b32 {vr(t+1)}, 5, v0")
    a(f"s_and_b32 {sr(S_T2)}, {sr(S_W)}, 1")
    a(f"s_lshr_b32 {sr(S_T3)}, {sr(S_W)}, 1")
    a(f"v_bfe_u32 {vr(t+2)}, v0, 1, 3")
    a(f"v_xor_b32 {vr(t+2)}, {vr(t+2)}, {vr(t+1)}")
    a(f"s_lshl_b32 {sr(S_T0)}, {sr(S_T2)}, 14")
    a(f"v_lshl_add_u32 {vr(t+3)}, {vr(t)}, 7, {sr(S_T0)}")
    for ks in range(4):
        a(f"v_xor_b32 {vr(t+4)}, {2*ks}, {vr(t+2)}")
        a(f"v_lshl_add_u32 {vr(V_XA+ks)}, {vr(t+4)}, 4, {vr(t+3)}")
    a(f"v_bfe_u32 {vr(t+2)}, v0, 2, 2")
    a(f"v_and_b32 {vr(t+3)}, 1, v0")
    a(f"v_bfe_u32 {vr(t+4)}, v0, 1, 1")
    a(f"s_cmp_ge_u32 {sr(S_CB)}, 10")
    a("s_cbranch_scc1 L_gc_v1")
    a(f"v_swap_b32 {vr(t+3)}, {vr(t+4)}")
    a.label("L_gc_v1")
    a(f"v_bfe_u32 {vr(t+5)}, v0, 4, 1")
    a(f"v_lshl_add_u32 {vr(t+4)}, {vr(t+5)}, 1, {vr(t+4)}")
    a(f"v_lshl_add_u32 {vr(t+5)}, {vr(t+1)}, 3, {vr(t+2)}")
    a(f"v_lshlrev_b32 {vr(t+5)}, 8, {vr(t+5)}")
    a(f"v_lshl_add_u32 {vr(t+5)}, {vr(t+3)}, 3, {vr(t+5)}")
    a(f"v_lshl_add_u32 {vr(t+5)}, {vr(t+4)}, 4, {vr(t+5)}")
    a(f"v_add_u32 {vr(t+5)}, 32768, {vr(t+5)}")
    for T in range(2):
        a(f"s_lshl_b32 {sr(S_T0)}, {sr(S_T3)}, 1")
        a(f"s_add_u32 {sr(S_T0)}, {sr(S_T0)}, {T}")
        a(f"v_xor_b32 {vr(t+6)}, {sr(S_T0)}, {vr(t+2)}")
        a(f"v_lshl_add_u32 {vr(V_WA+T)}, {vr(t+6)}, 6, {vr(t+5)}")
    a(f"s_mov_b32 {sr(S_STG)}, 0")
    a(f"s_mov_b32 {sr(S_SLOT)}, 0")
    a(f"s_mov_b32 {sr(S_C48K)}, {SLOT}")
    for i in range(64):
        a(f"v_mov_b64 {vr(V_ACC+2*i,2)}, 0")
    a(f"s_and_b32 {sr(S_T4)}, {sr(S_TB)}, 7")
    a(f"s_lshl_b32 {sr(S_T4)}, {sr(S_T4)}, 1")
    a(f"s_add_u32 {sr(S_T4)}, {sr(S_T4)}, {sr(S_T2)}")
    a(f"s_lshl_b32 {sr(S_T4)}, {sr(S_T4)}, 1")
    a(f"s_cmp_ge_u32 {sr(S_CB)}, 10")
    a("s_cbranch_scc1 L_gv")
    a(f"s_cmp_lt_u32 {sr(S_CB)}, 5")
    a(f"s_mov_b32 {sr(S_SCALE)}, {f32(QSCALE)}")
    a(f"s_cselect_b32 {sr(S_T0)}, {QOFF}, 0")
    a(f"s_cselect_b32 {sr(S_T5)}, 0, 1")
    a(f"s_lshl_b32 {sr(S_T1)}, {QH}, {sr(S_T5)}")
    a(f"s_lshl_b32 {sr(S_T5)}, 2560, {sr(S_T5)}")
    a(f"s_add_u32 {sr(S_POFF2)}, {sr(S_POFF)}, {sr(S_T5)}")
    a(f"s_cmp_lt_u32 {sr(S_CB)}, 5")
    a(f"s_cselect_b32 {sr(S_T2)}, 0, 5")
    a(f"s_mov_b32 {sr(S_SCALE+1)}, {sr(S_SCALE)}")
    a(f"s_mul_i32 {sr(S_T4)}, {sr(S_T4)}, {sr(S_T5)}")
    a(f"s_add_u32 {sr(S_T0)}, {sr(S_T0)}, {sr(S_T4)}")
    a(f"s_sub_u32 {sr(S_T2)}, {sr(S_CB)}, {sr(S_T2)}")
    a(f"s_lshl_b32 {sr(S_T2)}, {sr(S_T2)}, 4")
    a(f"s_lshl_b32 {sr(S_T3)}, {sr(S_T3)}, 3")
    a(f"s_add_u32 {sr(S_T2)}, {sr(S_T2)}, {sr(S_T3)}")
    a(f"v_lshl_add_u32 {vr(t+2)}, {vr(t)}, 4, {sr(S_T0)}")
    a(f"v_add_u32 {vr(t+3)}, {sr(S_T2)}, {vr(t+1)}")
    a(f"v_mov_b32 {vr(t+8)}, {sr(S_T1)}")
    a(f"v_mov_b32 {vr(t+9)}, 1024")
    for q in range(4):
        a(f"v_add_u32 {vr(t+4)}, {2*q}, {vr(t+3)}")
        a(f"v_mul_u32_u24 {vr(t+5)}, 205, {vr(t+4)}")
        a(f"v_lshrrev_b32 {vr(t+5)}, 10, {vr(t+5)}")
        a(f"v_mul_u32_u24 {vr(t+6)}, 5, {vr(t+5)}")
        a(f"v_sub_u32 {vr(t+6)}, {vr(t+4)}, {vr(t+6)}")
        a(f"v_lshlrev_b32 {vr(t+5)}, 1, {vr(t+5)}")
        a(f"v_cmp_lt_u32 vcc, 2, {vr(t+6)}")
        a(f"v_cmp_eq_u32 {sr(S_M+2*q,2)}, 2, {vr(t+6)}")
        a("s_nop 0")
        a(f"v_addc_co_u32 {vr(t+5)}, vcc, 0, {vr(t+5)}, vcc")
        a(f"v_cmp_lt_u32 vcc, 2, {vr(t+6)}")
        a(f"v_subrev_u32 {vr(t+7)}, 3, {vr(t+6)}")
        a("s_nop 0")
        a(f"v_cndmask_b32 {vr(t+6)}, {vr(t+6)}, {vr(t+7)}, vcc")
        a(f"v_cndmask_b32 {vr(t+6)}, {vr(t+6)}, 4, {sr(S_M+2*q,2)}")
        a(f"v_mul_lo_u32 {vr(t+5)}, {vr(t+5)}, {vr(t+8)}")
        a(f"v_lshl_add_u32 {vr(t+5)}, {vr(t+6)}, 9, {vr(t+5)}")
        a(f"v_add_u32 {vr(V_SA+2*q)}, {vr(t+5)}, {vr(t+2)}")
        a(f"v_cndmask_b32 {vr(t+7)}, {vr(t+9)}, {vr(t+8)}, {sr(S_M+2*q,2)}")
        a(f"v_add_u32 {vr(V_SA+2*q+1)}, {vr(V_SA+2*q)}, {vr(t+7)}")
    g_body(False, "qk")
    a.label("L_gv")
    a(f"s_add_u32 {sr(S_POFF2)}, {sr(S_POFF)}, 5120")
    a(f"s_sub_u32 {sr(S_T0)}, {sr(S_CB)}, 10")
    a(f"s_lshl_b32 {sr(S_T0)}, {sr(S_T0)}, 7")
    a(f"s_lshl_b32 {sr(S_T3)}, {sr(S_T3)}, 6")
    a(f"s_add_u32 {sr(S_T0)}, {sr(S_T0)}, {sr(S_T3)}")
    a(f"s_mul_i32 {sr(S_T4)}, {sr(S_T4)}, 5120")
    a(f"s_add_u32 {sr(S_T4)}, {sr(S_T4)}, 2560")
    a(f"v_mul_u32_u24 {vr(t+2)}, 320, {vr(t+1)}")
    a(f"v_add_u32 {vr(t+2)}, {sr(S_T4)}, {vr(t+2)}")
    a(f"v_mov_b32 {vr(t+8)}, {KVH}")
    for T in range(2):
        a(f"v_add_u32 {vr(t+3)}, {sr(S_T0)}, {vr(t)}")
        if T: a(f"v_add_u32 {vr(t+3)}, 32, {vr(t+3)}")
        a(f"v_mul_u32_u24 {vr(t+4)}, 3277, {vr(t+3)}")
        a(f"v_lshrrev_b32 {vr(t+4)}, 16, {vr(t+4)}")
        a(f"v_mul_u32_u24 {vr(t+5)}, 20, {vr(t+4)}")
        a(f"v_sub_u32 {vr(t+5)}, {vr(t+3)}, {vr(t+5)}")
        a(f"v_mul_lo_u32 {vr(t+4)}, {vr(t+4)}, {vr(t+8)}")
        a(f"v_lshl_add_u32 {vr(t+4)}, {vr(t+5)}, 4, {vr(t+4)}")
        a(f"v_add_u32 {vr(V_SA+T)}, {vr(t+4)}, {vr(t+2)}")
    g_body(True, "v")

def g_body(isv, tag):
    a("s_barrier")
    stamp(1)
    a.lgkm = []
    g_reads(0); g_reads(1)
    a.label(f"L_gl_{tag}")
    a.wait_lgkm(('f', 0))
    g_mfmas(0, isv, 2)
    a.wait_lgkm(('f', 1))
    g_mfmas(1, isv, 3)
    a(f"s_add_u32 {sr(S_SLOT)}, {sr(S_SLOT)}, 1")
    a(f"s_cmp_eq_u32 {sr(S_SLOT)}, {NSLOT}")
    a(f"s_cselect_b32 {sr(S_DELTA)}, {(-(NSLOT-1)*SLOT) & 0xffffffff}, {sr(S_C48K)}")
    a(f"s_cselect_b32 {sr(S_SLOT)}, 0, {sr(S_SLOT)}")
    for i in range(6):
        a(f"v_add_u32 {vr(V_XA+i)}, {sr(S_DELTA)}, {vr(V_XA+i)}")
    a(f"s_add_u32 {sr(S_STG)}, {sr(S_STG)}, 1")
    a(f"s_cmp_eq_u32 {sr(S_STG)}, 10")
    a(f"s_cbranch_scc1 L_ge_{tag}")
    a.wait_lgkm(('f', 2))
    for t in range(OPT.get('gpre', 4)): g_mfma(2, t, isv)
    a("s_waitcnt lgkmcnt(0)"); a.lgkm = []
    a("s_barrier")
    L = g_read_list(0) + g_read_list(1)
    M = [(2, t) for t in range(OPT.get('gpre', 4), 8)] + [(3, t) for t in range(8)]
    n = 0
    for i, (ks, t) in enumerate(M):
        g_mfma(ks, t, isv)
        while n < 16 and n < (i + 1) * 16 / len(M) + 0.01:
            a.ds(L[n], ('f', n // 8)); n += 1
    a(f"s_branch L_gl_{tag}")
    a.label(f"L_ge_{tag}")
    a("s_waitcnt lgkmcnt(0)"); a.lgkm = []
    if OPT.get('cyc') == 2: stamp(2)
    if isv:
        g_tail(True, False)
    else:
        a(f"s_cmp_ge_u32 {sr(S_CB)}, 5")
        a(f"s_cbranch_scc1 L_nosc")
        g_tail(False, True)
        if OPT.get('cyc') != 2: stamp(2)
        a("s_branch L_attn")
        a.label("L_nosc")
        g_tail(False, False)
    if OPT.get('cyc') != 2: stamp(2)
    a("s_branch L_attn")

RB = 1024
S_HK, S_LW, S_PF = 62, 23, 22
TQB, TQA, V_PL, QS1 = 220, 222, 224, 232
S_LO, S_HI, S_VM, S_NINF = 64, 66, 68, 70
S_T, S_LIM, S_FB, S_DM = 56, 57, 58, 59
S_IT = 54
S_DL = 55
S_QOFF = 60
S_OB = 61
S_KLO, S_KHI, S_WIN, S_PASS = 73, 74, 75, 76
V_L16, V_AK, V_AT, V_AV = 1, 2, 3, 4
V_BK, V_BT, V_BV = 5, 8, 11
V_OA, V_OT = 14, 15
V_T = 16
QA, QB = 24, 32
V_A1, V_BM = 42, 216
P = 44
SB = [52, 68]
O = 84
CM = 100
KB = [116, 126]
VB = 136
CD, CF, C0 = 168, 184, 200
V_Q16 = 218
MOFF = 63.0
NPRE = OPT.get('npre', 6)
bulk = (lambda: OPT.get('bulk_sc1', 1))

def m16(d, A, B, C):
    a(f"v_mfma_f32_32x32x16_bf16 {vr(d,16)}, {vr(A,4)}, {vr(B,4)}, {C if isinstance(C,str) else vr(C,16)}")
def m8(d, A, B, C):
    a(f"v_mfma_f32_32x32x8_bf16 {vr(d,16)}, {vr(A,2)}, {vr(B,2)}, {C if isinstance(C,str) else vr(C,16)}")

def at_setup():
    t = V_T
    a(f"s_lshl_b32 {sr(S_T)}, {sr(S_QB)}, 3")
    a(f"s_add_u32 {sr(S_T)}, {sr(S_T)}, {sr(S_W)}")
    a(f"s_mov_b32 {sr(S_LO)}, -1"); a(f"s_mov_b32 {sr(S_LO+1)}, 0")
    a(f"s_mov_b32 {sr(S_HI)}, 0"); a(f"s_mov_b32 {sr(S_HI+1)}, -1")
    a(f"s_mov_b32 {sr(S_VM)}, 0xfffff"); a(f"s_mov_b32 {sr(S_VM+1)}, 0xfffff")
    a(f"s_mov_b32 {sr(S_NINF)}, 0xff800000"); a(f"s_mov_b32 {sr(S_NINF+1)}, 0xff800000")
    a(f"s_cmp_ge_u32 {sr(S_W)}, 4")
    a(f"s_cselect_b32 {sr(S_HK)}, 0x3c, 0xc4")
    a(f"v_mov_b32 {vr(V_PL)}, 0")
    a(f"v_lshlrev_b32 {vr(V_L16)}, 4, v0")
    a(f"v_and_b32 {vr(V_Q16)}, 0x1f0, {vr(V_L16)}")
    a(f"v_lshrrev_b32 {vr(t+1)}, 5, v0")
    a(f"v_mov_b32 {vr(V_AK)}, {vr(V_L16)}")
    a(f"v_lshl_add_u32 {vr(V_AT)}, {vr(t+1)}, 3, {vr(V_Q16)}")
    a(f"v_add_u32 {vr(V_AT)}, 2048, {vr(V_AT)}")
    a(f"v_mul_u32_u24 {vr(V_AV)}, 320, {vr(t+1)}")
    a(f"v_add_u32 {vr(V_AV)}, {vr(V_AV)}, {vr(V_Q16)}")
    a(f"v_add_u32 {vr(V_AV)}, 2560, {vr(V_AV)}")
    a(f"s_mov_b32 {sr(S_T0)}, 0x3f803f80"); a(f"s_mov_b32 {sr(S_T1)}, 0x3f803f80")
    if OPT.get('vz', 1):
        for i in range(16):
            a(f"v_mov_b64 {vr(VB+2*i,2)}, 0")
        a("s_mov_b32 exec_lo, 0x11000000"); a("s_mov_b32 exec_hi, 0x11000000")
    for i in range(16):
        a(f"v_mov_b64 {vr(VB+2*i,2)}, {sr(S_T0,2)}")
    a("s_mov_b64 exec, -1")
    for r in (QA + 4, QA + 6, V_A1, V_BM):
        a(f"v_mov_b64 {vr(r,2)}, 0")
    a(f"s_mov_b64 exec, {sr(S_LO,2)}")
    a(f"v_mov_b32 {vr(V_A1)}, 0x3f80")
    a("s_mov_b64 exec, -1")
    a(f"v_bfe_u32 {vr(t+2)}, v0, 4, 1")
    a(f"v_mul_u32_u24 {vr(t+2)}, 20480, {vr(t+2)}")
    a(f"v_and_b32 {vr(t+3)}, 0xf0, {vr(V_L16)}")
    a(f"s_mul_i32 {sr(S_T0)}, {sr(S_T)}, 40960")
    a(f"v_add3_u32 {vr(t+2)}, {vr(t+2)}, {vr(t+3)}, {sr(S_T0)}")
    a(f"s_lshl_b32 {sr(S_T0)}, {sr(S_HEAD)}, 9")
    a(f"v_lshl_add_u32 {vr(V_OA)}, {vr(t+1)}, 8, {vr(t+2)}")
    a(f"v_add_u32 {vr(V_OA)}, {sr(S_T0)}, {vr(V_OA)}")
    a(f"s_lshr_b32 {sr(S_T0)}, {sr(S_HEAD)}, 3")
    a(f"s_lshl_b32 {sr(S_T0)}, {sr(S_T0)}, 10")
    a(f"s_and_b32 {sr(S_T1)}, {sr(S_HEAD)}, 3")
    a(f"s_lshl_b32 {sr(S_T1)}, {sr(S_T1)}, 8")
    a(f"s_add_u32 {sr(S_T0)}, {sr(S_T0)}, {sr(S_T1)}")
    a(f"s_and_b32 {sr(S_T1)}, {sr(S_HEAD)}, 4")
    a(f"s_lshl_b32 {sr(S_T1)}, {sr(S_T1)}, 1")
    a(f"s_add_u32 {sr(S_T0)}, {sr(S_T0)}, {sr(S_T1)}")
    a(f"s_add_u32 {sr(S_T0)}, {sr(S_T0)}, 16384")
    a(f"v_add_u32 {vr(V_OT)}, {sr(S_T0)}, {vr(t+2)}")
    a(f"s_mul_i32 {sr(S_QOFF)}, {sr(S_HEAD)}, {QH}")
    a(f"s_lshr_b32 {sr(S_T0)}, {sr(S_T)}, 1")
    a(f"s_mul_i32 {sr(S_T0)}, {sr(S_T0)}, 2560")
    a(f"s_add_u32 {sr(S_QOFF)}, {sr(S_QOFF)}, {sr(S_T0)}")
    a(f"s_add_u32 {sr(S_QOFF)}, {sr(S_QOFF)}, {QOFF}")
    a(f"s_lshl_b32 {sr(S_DL)}, {sr(S_W)}, 10")
    a(f"s_lshr_b32 {sr(S_T0)}, {sr(S_T)}, 1")
    a(f"s_lshl_b32 {sr(S_T0)}, {sr(S_T0)}, 9")
    a(f"s_lshl_b32 {sr(S_T1)}, {sr(S_HEAD)}, 4")
    a(f"s_add_u32 {sr(S_T0)}, {sr(S_T0)}, {sr(S_T1)}")
    a(f"s_and_b32 {sr(S_T1)}, {sr(S_T)}, 1")
    a(f"s_lshl_b32 {sr(S_T1)}, {sr(S_T1)}, 3")
    a(f"s_add_u32 {sr(S_T0)}, {sr(S_T0)}, {sr(S_T1)}")
    a(f"s_add_u32 {sr(S_PF)}, {sr(S_T0)}, {FLAGS + FLSTRIDE}")

def b_setup():
    t = V_T
    for c in range(3):
        if c == 0: a(f"s_mov_b32 {sr(S_T0)}, {sr(S_LW)}")
        elif c == 1: a(f"s_add_u32 {sr(S_T0)}, {sr(S_LW)}, 1")
        else:
            a(f"s_cmp_eq_u32 {sr(S_T)}, 0")
            a(f"s_addc_u32 {sr(S_T0)}, {sr(S_LW)}, 7")
        a(f"s_lshr_b32 {sr(S_T1)}, {sr(S_T0)}, 1")
        a(f"s_mul_i32 {sr(S_T1)}, {sr(S_T1)}, 5120")
        a(f"s_add_u32 {sr(S_T1)}, {sr(S_T1)}, {(RB - 163840) & 0xffffffff:#x}")
        a(f"s_and_b32 {sr(S_T0)}, {sr(S_T0)}, 1")
        a(f"v_add_u32 {vr(V_BT+c)}, {sr(S_T1)}, {vr(V_AT)}")
        a(f"s_lshl_b32 {sr(S_T2)}, {sr(S_T0)}, 10")
        a(f"s_add_u32 {sr(S_T2)}, {sr(S_T2)}, {sr(S_T1)}")
        a(f"v_add_u32 {vr(V_BK+c)}, {sr(S_T2)}, {vr(V_AK)}")
        a(f"s_mul_i32 {sr(S_T2)}, {sr(S_T0)}, 1280")
        a(f"s_add_u32 {sr(S_T2)}, {sr(S_T2)}, {sr(S_T1)}")
        a(f"v_add_u32 {vr(V_BV+c)}, {sr(S_T2)}, {vr(V_AV)}")
    a(f"s_cmp_eq_u32 {sr(S_T)}, 0")
    a(f"s_cselect_b32 {sr(S_T0)}, {sr(S_NINF)}, 0")
    a(f"v_mov_b32 {vr(t+2)}, {sr(S_T0)}")
    a(f"s_cmp_eq_u32 {sr(S_QB)}, 0")
    a(f"s_cselect_b32 {sr(S_T0)}, {sr(S_NINF)}, 0")
    a(f"v_mov_b32 {vr(t+3)}, {sr(S_T0)}")
    a(f"s_max_u32 {sr(S_LIM)}, {sr(S_LW)}, 1")
    a(f"s_add_u32 {sr(S_LIM)}, {sr(S_LIM)}, 1")
    a(f"s_cmp_eq_u32 {sr(S_QB)}, 0")
    a(f"s_cselect_b32 {sr(S_LIM)}, {sr(S_LIM)}, 99")
    a(f"v_mov_b32 {vr(t+4)}, {sr(S_NINF)}")
    a(f"v_mov_b32 {vr(t+5)}, 0")
    for i in range(16):
        r0 = 8 * (i // 4) + i % 4
        a(f"s_mov_b32 vcc_lo, {(0xffffffff << r0) & 0xffffffff:#x}")
        a(f"s_mov_b32 vcc_hi, {(0xffffffff << (r0 + 4)) & 0xffffffff:#x}")
        a(f"v_cndmask_b32 {vr(CD+i)}, {vr(t+4)}, {vr(t+2)}, vcc")
        a(f"v_cndmask_b32 {vr(CF+i)}, {vr(t+3)}, {vr(t+4)}, vcc")
        a(f"v_cndmask_b32 {vr(C0+i)}, {vr(t+2)}, {vr(t+5)}, vcc")
    for r in (QB + 4, QB + 6, QB + 8):
        a(f"v_mov_b64 {vr(r,2)}, 0")
    a(f"s_bitcmp1_b32 {sr(S_W)}, 0")
    a(f"s_cselect_b64 exec, {sr(S_HI,2)}, {sr(S_LO,2)}")
    a(f"v_mov_b64 {vr(QB+4,2)}, {vr(TQB,2)}")
    a("s_not_b64 exec, exec")
    a(f"v_mov_b64 {vr(QB+6,2)}, {vr(TQB,2)}")
    a(f"s_cmp_eq_u32 {sr(S_T)}, 0")
    a(f"s_cselect_b64 exec, {sr(S_LO,2)}, exec")
    a(f"v_mov_b64 {vr(QB+8,2)}, {vr(TQB,2)}")
    a("s_mov_b64 exec, -1")

def q_soff(p):
    a(f"s_and_b32 {sr(S_T2)}, {sr(S_T)}, 1")
    a(f"s_lshl_b32 {sr(S_T0)}, {sr(S_T2)}, 10")
    a(f"s_add_u32 {sr(S_T0)}, {sr(S_T0)}, {sr(S_QOFF)}")
    a(f"s_lshl_b32 {sr(S_T1)}, {sr(S_T2)}, 3")
    a(f"s_add_u32 {sr(S_T1)}, {sr(S_T1)}, {sr(S_QOFF)}")
    if isinstance(p, int):
        if p:
            a(f"s_add_u32 {sr(S_T0)}, {sr(S_T0)}, {PSTRIDE}")
            a(f"s_add_u32 {sr(S_T1)}, {sr(S_T1)}, {PSTRIDE}")
    else:
        a(f"s_add_u32 {sr(S_T0)}, {sr(S_T0)}, {p}")
        a(f"s_add_u32 {sr(S_T1)}, {sr(S_T1)}, {p}")

def a_dma(tag=None):
    a(f"s_mov_b32 m0, {sr(S_DL)}")
    a(f"s_add_u32 {sr(S_T0)}, {sr(S_DL)}, {sr(S_KVOFF)}")
    dma(V_L16, SRD_WS, S_T0, sc1=bulk(), tag=tag)
    a(f"s_add_u32 {sr(S_DL)}, {sr(S_DL)}, 8192")

def standin(X):
    t = V_T
    a(f"v_max3_f32 {vr(t)}, {vr(X)}, {vr(X+1)}, {vr(X+2)}")
    a(f"v_max3_f32 {vr(t+1)}, {vr(X+3)}, {vr(X+4)}, {vr(X+5)}")
    a(f"v_max3_f32 {vr(t+2)}, {vr(X+6)}, {vr(X+7)}, {vr(X+8)}")
    a(f"v_max3_f32 {vr(t+3)}, {vr(X+9)}, {vr(X+10)}, {vr(X+11)}")
    a(f"v_max3_f32 {vr(t)}, {vr(t)}, {vr(X+12)}, {vr(X+13)}")
    a(f"v_max3_f32 {vr(t+1)}, {vr(t+1)}, {vr(X+14)}, {vr(X+15)}")
    a(f"v_max3_f32 {vr(t)}, {vr(t)}, {vr(t+2)}, {vr(t+3)}")
    a(f"v_max_f32 {vr(t)}, {vr(t)}, {vr(t+1)}")
    a(f"v_mov_b32 {vr(t+1)}, {vr(t)}")
    a("s_nop 1")
    a(f"v_permlane32_swap_b32 {vr(t)}, {vr(t+1)}")
    a("s_nop 1")
    a(f"v_max_f32 {vr(t)}, {vr(t)}, {vr(t+1)}")
    a(f"v_sub_f32 {vr(t)}, {f32(-MOFF)}, {vr(t)}")
    a(f"v_cvt_pk_bf16_f32 {vr(V_BM)}, {vr(t)}, {vr(t)}")
    a("s_nop 1")

def slot(X, Y, nxt, v1, v0, pre=None, mid=None, o_c=None):
    e = lambda i: a(f"v_exp_f32 {vr(X+i)}, {vr(X+i)}")
    c = lambda i: a(f"v_cvt_pk_bf16_f32 {vr(P+i)}, {vr(X+2*i)}, {vr(X+2*i+1)}")
    if pre: pre()
    if nxt:
        a.wait_lgkm(nxt[5])
        m8(Y, nxt[0], nxt[1], nxt[2])
    for i in range(5): e(i)
    if v1 is not None: m16(O, v1, P + 4, O)
    for i in range(5, 8): e(i)
    for i in range(4): c(i)
    if nxt: m16(Y, nxt[3], nxt[4], Y)
    if mid: mid()
    for i in range(8, 13): e(i)
    a.wait_lgkm(v0[1])
    m16(O, v0[0], P, O if o_c is None else o_c)
    for i in range(13, 16): e(i)
    for i in range(4, 8): c(i)

def vreads(dst, addr, offs, tag):
    a(f"s_mov_b64 exec, {sr(S_VM,2)}")
    for n, off in enumerate(offs):
        a.ds(f"ds_read_b128 {vr(dst+4*n,4)}, {vr(addr)} offset:{off}", tag)
    a("s_mov_b64 exec, -1")

def finalize(p):
    t = V_T
    a("s_nop 7"); a("s_nop 3")
    a(f"v_rcp_f32 {vr(t)}, {vr(O+12)}")
    a(f"v_mul_f32 {vr(t+1)}, {f32(2.0**28)}, {vr(O+12)}")
    a(f"v_mul_f32 {vr(t+2)}, {f32(2.0**28)}, {vr(t)}")
    a(f"v_mul_f32 {vr(t+1)}, 0, {vr(t+1)}")
    a(f"v_mul_f32 {vr(t+2)}, 0, {vr(t+2)}")
    for i in range(12):
        a(f"v_fma_f32 {vr(t+1+i%2)}, {vr(O+i)}, 0, {vr(t+1+i%2)}")
    a(f"v_cmp_u_f32 vcc, {vr(t+1)}, {vr(t+2)}")
    a(f"s_mov_b32 {sr(S_FB)}, {p}")
    a("s_nop 3")
    a("s_cbranch_vccnz L_fallback")
    a.label(f"L_fin{p}")
    for i in range(12):
        a(f"v_mul_f32 {vr(O+i)}, {vr(t)}, {vr(O+i)}")
    for i in range(6):
        a(f"v_cvt_pk_bf16_f32 {vr(P+i)}, {vr(O+2*i)}, {vr(O+2*i+1)}")
    a(f"s_mov_b32 {sr(S_OB)}, {OOFF + p*OSTRIDE}")
    a.vmem(f"buffer_store_dwordx4 {vr(P,4)}, {vr(V_OA)}, {sr(SRD_WS,4)}, {sr(S_OB)} offen sc1", 'ost')
    a(f"s_mov_b64 exec, {sr(S_LO,2)}")
    a.vmem(f"buffer_store_dwordx2 {vr(P+4,2)}, {vr(V_OT)}, {sr(SRD_WS,4)}, {sr(S_OB)} offen sc1", 'ost')
    a("s_mov_b64 exec, -1")

def o_flag(t=V_T):
    a(f"v_mov_b64 {vr(t,2)}, {sr(S_NONCE,2)}")
    a("s_mov_b64 exec, 1")
    a(f"buffer_store_dwordx2 {vr(t,2)}, {vr(V_L16)}, {sr(SRD_WS,4)}, {sr(S_PF)} offen sc1")
    a("s_mov_b64 exec, -1")

OOL = []

def at_b():
    def cls(s):
        if s == 0: return 2, 0
        i = 0 if s == 1 else s
        return (0, ((8 - i) // 2) * 5120) if i % 2 == 0 else (1, ((7 - i) // 2) * 5120)
    def kread(s):
        c, off = cls(s); kb = KB[s % 2]
        a.ds(f"ds_read_b64 {vr(kb+8,2)}, {vr(V_BT+c)} offset:{off}", ('k', s))
        a.ds(f"ds_read_b128 {vr(kb,4)}, {vr(V_BK+c)} offset:{off}", ('k', s))
    def vread(s):
        c, off = cls(s)
        vreads(VB + 8 * (s % 4), V_BV + c, [off, off + 640], ('v', s))
    qt = lambda s: QB + 4 + 2 * cls(s)[0]
    a.lgkm = []
    kread(0); kread(1); vread(0)
    a.wait_lgkm(('k', 0))
    m8(SB[0], KB[0] + 8, qt(0), C0)
    m16(SB[0], KB[0], QB, SB[0])
    a("s_nop 7"); a("s_nop 3")
    standin(SB[0])
    m8(SB[0], V_A1, V_BM, SB[0])
    m8(CD, V_A1, V_BM, CD)
    m8(CM, V_A1, V_BM, "0")
    m8(CF, V_A1, V_BM, CF)
    a("s_nop 6")
    for s in range(9):
        def pre(s=s):
            if s + 2 <= 8: kread(s + 2)
            if s + 1 <= 8: vread(s + 1)
            if 2 <= s + 1 <= 7:
                a(f"s_cmp_eq_u32 {sr(S_LIM)}, {s+1}")
                a(f"s_cbranch_scc1 L_lim{s+1}")
                a.label(f"L_limr{s+1}")
                def ool(s=s):
                    a.label(f"L_lim{s+1}")
                    a("s_nop 7"); a("s_nop 3")
                    for i in range(8): a(f"v_mov_b64 {vr(CM+2*i,2)}, {sr(S_NINF,2)}")
                    a("s_nop 1")
                    a(f"s_branch L_limr{s+1}")
                OOL.append(ool)
        def mid(s=s):
            if s == 4:
                a("s_waitcnt vmcnt(0)")
                o_flag()
        nxt = None
        if s < 8:
            n = s + 1
            nxt = (KB[n % 2] + 8, qt(n), CD if n == 1 else CF if n == 8 else CM, KB[n % 2], QB, ('k', n))
        slot(SB[s % 2], SB[(s + 1) % 2], nxt, None if s == 0 else VB + 8 * ((s - 1) % 4) + 4,
             (VB + 8 * (s % 4), ('v', s)), pre, mid, "0" if s == 0 else None)
    a("s_nop 1")
    m16(O, VB + 8 * (8 % 4) + 4, P + 4, O)
    finalize(1)

def at_a():
    def kread(u, tag):
        kb = KB[u % 2]
        a.ds(f"ds_read_b64 {vr(kb+8,2)}, {vr(V_AT)} offset:{u*5120}", tag)
        a.ds(f"ds_read_b128 {vr(kb,4)}, {vr(V_AK)} offset:{u*5120}", tag)
        a.ds(f"ds_read_b128 {vr(kb+4,4)}, {vr(V_AK)} offset:{u*5120+1024}", tag)
    def vread(u, tag):
        vreads(VB + 16 * (u % 2), V_AV, [u * 5120 + o for o in (0, 640, 1280, 1920)], tag)
    a.lgkm = []
    kread(0, ('k', 0)); vread(0, ('v', 0))
    for i in range(8): a(f"v_mov_b64 {vr(O+2*i,2)}, 0")
    a(f"v_mov_b64 {vr(P+4,2)}, 0"); a(f"v_mov_b64 {vr(P+6,2)}, 0")
    a.wait_lgkm(('k', 0))
    m8(SB[0], KB[0] + 8, QA + 4, "0")
    m16(SB[0], KB[0], QA, SB[0])
    a("s_nop 7"); a("s_nop 3")
    standin(SB[0])
    m8(CM, V_A1, V_BM, "0")
    m8(SB[0], V_A1, V_BM, SB[0])
    a(f"s_mov_b32 {sr(S_IT)}, 1")
    a("s_nop 7")
    st0 = list(a.lgkm)
    def body(ndma):
        for u in range(4):
            kb, kn = KB[u % 2], KB[(u + 1) % 2]
            vb, vp = VB + 16 * (u % 2), VB + 16 * ((u + 1) % 2)
            def pre0(u=u):
                kread(u + 1, ('k', (u + 1) % 4))
            def mid0(u=u):
                for n in range(ndma[2 * u]): a_dma()
                if u == 3:
                    a(f"v_add_u32 {vr(V_AK)}, {sr(S_DM)}, {vr(V_AK)}")
                    a(f"v_add_u32 {vr(V_AT)}, {sr(S_DM)}, {vr(V_AT)}")
            def pre1(u=u):
                vread(u + 1, ('v', (u + 1) % 4))
            def mid1(u=u):
                for n in range(ndma[2 * u + 1]): a_dma()
                if u == 3:
                    a(f"v_add_u32 {vr(V_AV)}, {sr(S_DM)}, {vr(V_AV)}")
            slot(SB[0], SB[1], (kb + 8, QA + 6, CM, kb + 4, QA, ('k', u)), vp + 12, (vb, ('v', u)), pre0, mid0)
            slot(SB[1], SB[0], (kn + 8, QA + 4, CM, kn, QA, ('k', (u + 1) % 4)), vb + 4, (vb + 8, ('v', u)), pre1, mid1)
        assert a.lgkm == st0, (a.lgkm, st0)
    nd = [int(c) for c in str(OPT.get('nd', '33332000'))]
    assert sum(nd) + NPRE == 20
    body(nd)
    t = V_T
    a(f"v_lshlrev_b32 {vr(t)}, 2, v0")
    a(f"v_mov_b32 {vr(t+1)}, 0")
    a("s_waitcnt vmcnt(0)")
    a("s_barrier")
    a("s_mov_b64 exec, 0xffff")
    a(f"ds_write_b32 {vr(t)}, {vr(t+1)}")
    a("s_mov_b64 exec, -1")
    a("s_waitcnt lgkmcnt(0)")
    a("s_barrier")
    a.label("L_aloop")
    l0 = len(a.lines)
    body([0] * 8)
    a(f"s_add_u32 {sr(S_IT)}, {sr(S_IT)}, 1")
    a(f"s_bitcmp1_b32 {sr(S_HK)}, {sr(S_IT)}")
    a("s_cbranch_scc1 L_hook")
    a.label("L_ahookr")
    a(f"s_cmp_lt_u32 {sr(S_IT)}, 8")
    a("s_cbranch_scc1 L_aloop")
    bl = a.lines[l0:]
    errs = check_hazards(bl + bl)
    assert not errs
    def hooks():
        a.label("L_hook")
        a(f"s_cmp_eq_u32 {sr(S_IT)}, 7")
        a("s_cbranch_scc1 L_h7")
        a(f"s_cmp_eq_u32 {sr(S_IT)}, 6")
        a("s_cbranch_scc1 L_h6")
        a(f"s_lshl_b32 {sr(S_T0)}, {sr(S_IT)}, 2")
        sb_arrive(sr(S_T0), t)
        a("s_waitcnt lgkmcnt(0)")
        a("s_branch L_ahookr")
        a.label("L_h6")
        g_flag_addr(V_PL, t, 1)
        a(f"buffer_load_dwordx2 {vr(V_PL+2,2)}, {vr(V_PL)}, {sr(SRD_WS,4)}, {sr(S_FL)} offen sc1")
        a("s_branch L_ahookr")
        a.label("L_h7")
        a("s_waitcnt vmcnt(0)")
        a(f"v_cmp_ne_u64 vcc, {sr(S_NONCE,2)}, {vr(V_PL+2,2)}")
        a("s_nop 4")
        a("s_cbranch_vccz L_bpoll_done")
        poll_flags("L_bpoll", [V_PL], V_PL + 2, S_FL)
        sb_wait("L_w2", 2, 8, t)
        q_soff(1)
        a(f"buffer_load_dwordx4 {vr(QB,4)}, {vr(V_L16)}, {sr(SRD_WS,4)}, {sr(S_T0)} offen sc1")
        a(f"buffer_load_dwordx2 {vr(TQB,2)}, {vr(V_Q16)}, {sr(SRD_WS,4)}, {sr(S_T1)} offen offset:2048 sc1")
        a(f"s_add_u32 {sr(S_T0)}, {sr(S_T0)}, 5120")
        a(f"s_add_u32 {sr(S_T1)}, {sr(S_T1)}, 5120")
        a(f"buffer_load_dwordx4 {vr(QS1,4)}, {vr(V_L16)}, {sr(SRD_WS,4)}, {sr(S_T0)} offen sc1")
        a(f"buffer_load_dwordx2 {vr(QS1+4,2)}, {vr(V_Q16)}, {sr(SRD_WS,4)}, {sr(S_T1)} offen offset:2048 sc1")
        a(f"s_lshl_b32 {sr(S_T5)}, {sr(S_W)}, 10")
        a(f"s_mul_i32 {sr(S_T2)}, {sr(S_QB)}, 20480")
        a(f"s_add_u32 {sr(S_T2)}, {sr(S_T2)}, {sr(S_T5)}")
        a(f"s_add_u32 {sr(S_T3)}, {sr(S_KVOFF)}, {PSTRIDE}")
        for n in range(10):
            a(f"s_add_u32 m0, {sr(S_T5)}, {RB + 4096*n}")
            a(f"s_add_i32 {sr(S_T4)}, {sr(S_T2)}, {(4096*n - 20480) & 0xffffffff:#x}")
            a(f"s_max_i32 {sr(S_T4)}, {sr(S_T4)}, 0")
            a(f"s_add_u32 {sr(S_T4)}, {sr(S_T4)}, {sr(S_T3)}")
            dma(V_L16, SRD_WS, S_T4, sc1=bulk())
        a("s_branch L_ahookr")
    OOL.append(hooks)
    a("s_nop 1")
    m16(O, VB + 16 + 12, P + 4, O)
    a("s_waitcnt lgkmcnt(0)"); a.lgkm = []
    finalize(0)

def fallback():
    t = V_T
    FQ, FQT = C0, C0 + 4
    X = SB[0]; kb = KB[0]
    vm, vq, vd, vav = t + 1, t + 2, t + 3, t + 4
    a.label("L_fallback")
    a("s_waitcnt vmcnt(0) lgkmcnt(0)")
    a(f"s_cmp_eq_u32 {sr(S_FB)}, 1")
    a(f"s_cselect_b32 {sr(S_T3)}, {PSTRIDE}, 0")
    a(f"s_cselect_b32 {sr(S_WIN)}, 256, -1")
    a(f"s_cselect_b32 {sr(S_KHI)}, {sr(S_T)}, 63")
    a(f"s_cselect_b32 {sr(S_KLO)}, {sr(S_T)}, 0")
    a(f"s_cselect_b32 {sr(S_T4)}, 0, 4096")
    a(f"s_max_u32 {sr(S_KLO)}, {sr(S_KLO)}, 8")
    a(f"s_sub_u32 {sr(S_KLO)}, {sr(S_KLO)}, 8")
    q_soff(sr(S_T3))
    a(f"s_add_u32 {sr(S_T3)}, {sr(S_T3)}, {sr(S_KVOFF)}")
    a(f"v_mov_b64 {vr(FQT,2)}, 0")
    a(f"buffer_load_dwordx4 {vr(FQ,4)}, {vr(V_L16)}, {sr(SRD_WS,4)}, {sr(S_T0)} offen sc1")
    a(f"s_mov_b64 exec, {sr(S_LO,2)}")
    a(f"buffer_load_dwordx2 {vr(FQT,2)}, {vr(V_Q16)}, {sr(SRD_WS,4)}, {sr(S_T1)} offen offset:2048 sc1")
    a("s_mov_b64 exec, -1")
    a(f"v_lshrrev_b32 {vr(vd)}, 5, v0")
    a(f"v_mul_u32_u24 {vr(vav)}, 320, {vr(vd)}")
    a(f"v_add_u32 {vr(vav)}, {vr(vav)}, {vr(V_Q16)}")
    a(f"v_lshlrev_b32 {vr(vd)}, 2, {vr(vd)}")
    a(f"v_and_b32 {vr(vq)}, 31, v0")
    a(f"v_sub_u32 {vr(vq)}, {vr(vq)}, {vr(vd)}")
    a(f"s_lshl_b32 {sr(S_T0)}, {sr(S_T)}, 5")
    a(f"s_add_u32 {sr(S_T0)}, {sr(S_T0)}, {sr(S_T4)}")
    a(f"v_add_u32 {vr(vq)}, {sr(S_T0)}, {vr(vq)}")
    a(f"v_mov_b32 {vr(vm)}, {sr(S_NINF)}")
    a(f"v_mov_b32 {vr(t+6)}, {sr(S_NINF)}")
    for i in range(8): a(f"v_mov_b64 {vr(O+2*i,2)}, 0")
    a(f"s_mov_b32 {sr(S_PASS)}, 0")
    a.label("L_fb_pass")
    a(f"s_mov_b32 {sr(S_T5)}, {sr(S_KLO)}")
    a.label("L_fb_loop")
    a(f"s_lshr_b32 {sr(S_T0)}, {sr(S_T5)}, 1")
    a(f"s_mul_i32 {sr(S_T0)}, {sr(S_T0)}, 5120")
    a(f"s_add_u32 {sr(S_T0)}, {sr(S_T0)}, {sr(S_T3)}")
    a(f"s_and_b32 {sr(S_T4)}, {sr(S_T5)}, 1")
    a(f"s_lshl_b32 {sr(S_T1)}, {sr(S_T4)}, 10")
    a(f"s_add_u32 {sr(S_T1)}, {sr(S_T1)}, {sr(S_T0)}")
    a(f"buffer_load_dwordx4 {vr(kb,4)}, {vr(V_L16)}, {sr(SRD_WS,4)}, {sr(S_T1)} offen sc1")
    a(f"s_lshl_b32 {sr(S_T1)}, {sr(S_T4)}, 3")
    a(f"s_add_u32 {sr(S_T1)}, {sr(S_T1)}, {sr(S_T0)}")
    a(f"buffer_load_dwordx2 {vr(kb+8,2)}, {vr(V_Q16)}, {sr(SRD_WS,4)}, {sr(S_T1)} offen offset:2048 sc1")
    a(f"s_mul_i32 {sr(S_T1)}, {sr(S_T4)}, 1280")
    a(f"s_add_u32 {sr(S_T1)}, {sr(S_T1)}, {sr(S_T0)}")
    a(f"s_mov_b64 exec, {sr(S_VM,2)}")
    a(f"buffer_load_dwordx4 {vr(VB,4)}, {vr(vav)}, {sr(SRD_WS,4)}, {sr(S_T1)} offen offset:2560 sc1")
    a(f"buffer_load_dwordx4 {vr(VB+4,4)}, {vr(vav)}, {sr(SRD_WS,4)}, {sr(S_T1)} offen offset:3200 sc1")
    a("s_mov_b64 exec, -1")
    a(f"s_lshl_b32 {sr(S_T0)}, {sr(S_T5)}, 5")
    a(f"v_subrev_u32 {vr(vd)}, {sr(S_T0)}, {vr(vq)}")
    a("s_waitcnt vmcnt(0)")
    m8(X, kb + 8, FQT, "0")
    m16(X, kb, FQ, X)
    a("s_nop 7"); a("s_nop 3")
    for i in range(16):
        a(f"v_subrev_u32 {vr(t+5)}, {8*(i//4)+i%4}, {vr(vd)}")
        a(f"v_cmp_gt_u32 vcc, {sr(S_WIN)}, {vr(t+5)}")
        a("s_nop 1")
        a(f"v_cndmask_b32 {vr(X+i)}, {vr(t+6)}, {vr(X+i)}, vcc")
    a(f"s_cmp_eq_u32 {sr(S_PASS)}, 1")
    a("s_cbranch_scc1 L_fb_p1")
    for i in range(8):
        a(f"v_max3_f32 {vr(vm)}, {vr(vm)}, {vr(X+2*i)}, {vr(X+2*i+1)}")
    a("s_branch L_fb_next")
    a.label("L_fb_p1")
    for i in range(16): a(f"v_sub_f32 {vr(X+i)}, {vr(X+i)}, {vr(vm)}")
    for i in range(16): a(f"v_exp_f32 {vr(X+i)}, {vr(X+i)}")
    a("s_nop 0")
    for i in range(8): a(f"v_cvt_pk_bf16_f32 {vr(P+i)}, {vr(X+2*i)}, {vr(X+2*i+1)}")
    a("s_nop 1")
    m16(O, VB, P, O)
    m16(O, VB + 4, P + 4, O)
    a("s_nop 7"); a("s_nop 3")
    a.label("L_fb_next")
    a(f"s_add_u32 {sr(S_T5)}, {sr(S_T5)}, 1")
    a(f"s_cmp_le_u32 {sr(S_T5)}, {sr(S_KHI)}")
    a("s_cbranch_scc1 L_fb_loop")
    a(f"s_cmp_eq_u32 {sr(S_PASS)}, 1")
    a("s_cbranch_scc1 L_fb_done")
    a(f"v_mov_b32 {vr(t+5)}, {vr(vm)}")
    a("s_nop 1")
    a(f"v_permlane32_swap_b32 {vr(vm)}, {vr(t+5)}")
    a("s_nop 1")
    a(f"v_max_f32 {vr(vm)}, {vr(vm)}, {vr(t+5)}")
    a(f"s_mov_b32 {sr(S_PASS)}, 1")
    a("s_branch L_fb_pass")
    a.label("L_fb_done")
    if OPT.get('fbcount'):
        a(f"v_mov_b32 {vr(t+5)}, 1")
        a(f"v_mov_b32 {vr(t+6)}, 64")
        a("s_mov_b64 exec, 1")
        a(f"global_atomic_add {vr(t+6)}, {vr(t+5)}, {sr(S_DBG,2)}")
        a("s_mov_b64 exec, -1")
    a(f"v_rcp_f32 {vr(t)}, {vr(O+12)}")
    a(f"s_cmp_eq_u32 {sr(S_FB)}, 1")
    a("s_cbranch_scc1 L_fin1")
    a("s_branch L_fin0")


V_LT, V_FA, V_FD, V_WM, V_WT, V_S, V_RW, V_RR, V_OS = 2, 3, 4, 6, 7, 8, 10, 11, 14
WF = 16
OF = 116
ACC = 196
V_WD = ACC
S_FO, S_OS, S_PEND, S_NEW, S_WFD, S_PH = 54, 55, 56, 57, 58, 59
S_OM = 73

def op_flag_addr():
    a(f"s_lshr_b32 {sr(S_T3)}, {sr(S_HEAD)}, 4")
    a(f"s_bfe_u32 {sr(S_T4)}, {sr(S_HEAD)}, 0x30001")
    a(f"s_lshl_b32 {sr(S_T4)}, {sr(S_T4)}, 2")
    a(f"s_and_b32 {sr(S_T0)}, {sr(S_HEAD)}, 1")
    a(f"s_add_u32 {sr(S_T4)}, {sr(S_T4)}, {sr(S_T0)}")
    a(f"s_lshl_b32 {sr(S_FO)}, {sr(S_T4)}, 2")
    a(f"s_add_u32 {sr(S_FO)}, {sr(S_FO)}, {sr(S_W)}")
    a(f"s_lshl_b32 {sr(S_FO)}, {sr(S_FO)}, 7")
    a(f"s_lshl_b32 {sr(S_T0)}, {sr(S_T3)}, 16")
    a(f"s_add_u32 {sr(S_FO)}, {sr(S_FO)}, {sr(S_T0)}")
    a(f"s_add_u32 {sr(S_FO)}, {sr(S_FO)}, {FLAGS + FLSTRIDE}")
    a(f"v_lshlrev_b32 {vr(V_FA)}, 3, v0")

def op_flag_load():
    a("s_mov_b64 exec, 0xffff")
    a(f"buffer_load_dwordx2 {vr(V_FD,2)}, {vr(V_FA)}, {sr(SRD_WS,4)}, {sr(S_FO)} offen sc1")
    a("s_mov_b64 exec, -1")

def op_setup():
    t = OF
    a(f"s_cmp_eq_u32 {sr(S_T3)}, 1")
    a(f"s_cselect_b64 {sr(S_T0,2)}, {sr(S_BWO,2)}, {sr(S_AWO,2)}")
    srd(SRD_X, S_T0, 640 * 1280)
    for i in range(5):
        a(f"v_add_u32 {vr(t)}, {64*i}, v0")
        a(f"v_mul_u32_u24 {vr(t+1)}, 205, {vr(t)}")
        a(f"v_lshrrev_b32 {vr(t+1)}, 11, {vr(t+1)}")
        a(f"v_mul_u32_u24 {vr(t+1)}, 1120, {vr(t+1)}")
        a(f"v_lshl_add_u32 {vr(V_WD+i)}, {vr(t)}, 4, {vr(t+1)}")
    a(f"s_mul_i32 {sr(S_T5)}, {sr(S_W)}, 25600")
    a(f"s_add_u32 {sr(S_T5)}, {sr(S_T5)}, {RB}")
    a(f"v_bfe_u32 {vr(t)}, v0, 2, 2")
    a(f"v_and_b32 {vr(t+1)}, 3, v0")
    a(f"v_lshl_add_u32 {vr(t+1)}, {vr(t+1)}, 3, {sr(S_T5)}")
    a(f"v_lshrrev_b32 {vr(t+2)}, 4, v0")
    a(f"v_mul_u32_u24 {vr(t+3)}, 20, {vr(t+2)}")
    a(f"v_add3_u32 {vr(t+3)}, {vr(t+3)}, {vr(t)}, 16")
    a(f"v_mul_u32_u24 {vr(t+3)}, 160, {vr(t+3)}")
    a(f"v_add_u32 {vr(V_WT)}, {vr(t+3)}, {vr(t+1)}")
    a(f"v_lshrrev_b32 {vr(t+3)}, 5, v0")
    a(f"v_mul_u32_u24 {vr(t+3)}, 20, {vr(t+3)}")
    a(f"v_bfe_u32 {vr(t+4)}, v0, 4, 1")
    a(f"v_lshl_add_u32 {vr(t+3)}, {vr(t+4)}, 2, {vr(t+3)}")
    a(f"v_add_u32 {vr(t+3)}, {vr(t+3)}, {vr(t)}")
    a(f"v_mul_u32_u24 {vr(t+3)}, 160, {vr(t+3)}")
    a(f"v_add_u32 {vr(V_WM)}, {vr(t+3)}, {vr(t+1)}")
    a(f"v_add_u32 {vr(V_RW)}, {sr(S_T5)}, {vr(V_L16)}")
    a(f"s_mul_i32 {sr(S_T1)}, {sr(S_T3)}, {OSTRIDE}")
    a(f"s_mul_i32 {sr(S_T2)}, {sr(S_T4)}, 81920")
    a(f"s_add_u32 {sr(S_T1)}, {sr(S_T1)}, {sr(S_T2)}")
    a(f"s_lshl_b32 {sr(S_T2)}, {sr(S_W)}, 12")
    a(f"s_add_u32 {sr(S_T1)}, {sr(S_T1)}, {sr(S_T2)}")
    a(f"s_add_u32 {sr(S_T1)}, {sr(S_T1)}, {OOFF}")
    for lb in range(4):
        a(f"s_add_u32 {sr(S_T0)}, {sr(S_W)}, {1+lb}")
        a(f"s_and_b32 {sr(S_T0)}, {sr(S_T0)}, 3")
        a(f"s_mul_i32 {sr(S_T0)}, {sr(S_T0)}, 20480")
        a(f"s_add_u32 {sr(S_OM+lb)}, {sr(S_T1)}, {sr(S_T0)}")
        if lb < 3:
            a(f"s_sub_u32 {sr(S_T0)}, {sr(S_W)}, {1+lb}")
            a(f"s_and_b32 {sr(S_T0)}, {sr(S_T0)}, 3")
            a(f"s_mul_i32 {sr(S_T0)}, {sr(S_T0)}, 25600")
            a(f"s_add_u32 {sr(S_T0)}, {sr(S_T0)}, {RB + 5120*lb}")
            a(f"v_add_u32 {vr(V_RR+lb)}, {sr(S_T0)}, {vr(V_L16)}")
    a(f"s_mul_i32 {sr(S_T0)}, {sr(S_W)}, 3072")
    a(f"s_sub_u32 {sr(S_T0)}, 16384, {sr(S_T0)}")
    a(f"v_add_u32 {vr(V_LT)}, {sr(S_T0)}, {vr(V_L16)}")
    a(f"v_and_b32 {vr(t+3)}, 15, v0")
    a(f"v_mul_u32_u24 {vr(t+3)}, 2560, {vr(t+3)}")
    a(f"v_lshl_add_u32 {vr(V_OS)}, {vr(t+2)}, 3, {vr(t+3)}")
    a(f"s_lshl_b32 {sr(S_T0)}, {sr(S_T4)}, 2")
    a(f"s_add_u32 {sr(S_T0)}, {sr(S_T0)}, {sr(S_W)}")
    a(f"s_mul_i32 {sr(S_OS)}, {sr(S_T0)}, {16*2560}")
    a(f"s_mul_i32 {sr(S_T0)}, {sr(S_T3)}, 1280")
    a(f"s_add_u32 {sr(S_OS)}, {sr(S_OS)}, {sr(S_T0)}")
    a(f"s_mul_i32 {sr(S_T2)}, {sr(S_QB)}, 160")
    a(f"s_add_u32 {sr(S_OS)}, {sr(S_OS)}, {sr(S_T2)}")
    a(f"s_mul_i32 {sr(S_T1)}, {sr(S_W)}, {160*1280}")
    a(f"s_add_u32 {sr(S_T4)}, {sr(S_T1)}, {sr(S_T2)}")
    a(f"s_mov_b32 {sr(S_WFD)}, 0")
    a(f"s_mov_b32 {sr(S_PH)}, 0")
    a(f"s_mov_b32 {sr(S_PEND)}, 0x11111")

def mm(acc, ks, ct, lb, first=False):
    a(f"v_mfma_f32_16x16x32_bf16 {vr(acc,4)}, {vr(WF+20*ks+4*ct,4)}, {vr(OF+16*ks+4*lb,4)}, {'0' if first else vr(acc,4)}")

def op_phase():
    op_flag_addr()
    op_flag_load()
    sb_arrive(9, V_S)
    op_setup()
    a(f"s_cmp_ge_u32 {sr(S_W)}, 2")
    a("s_cbranch_scc1 L_w9_done")
    sb_wait("L_w9", 9, 4, V_S)
    a(f"s_max_u32 {sr(S_T1)}, {sr(S_W)}, 1")
    a(f"s_lshl_b32 {sr(S_T1)}, {sr(S_T1)}, 2")
    a(f"s_add_u32 {sr(S_T1)}, {sr(S_T1)}, 8")
    sb_wait("L_wc", sr(S_T1), 4, V_S)
    for i in range(25):
        a(f"s_add_u32 m0, {sr(S_T5)}, {1024*i}")
        a(f"s_add_u32 {sr(S_T0)}, {sr(S_T4)}, {(i//5)*40960}")
        dma(V_WD + i % 5, SRD_X, S_T0)
    a("s_waitcnt vmcnt(25)")
    o_flag(V_S)
    for i in range(30): a(f"v_mov_b64 {vr(ACC+2*i,2)}, 0")
    a(f"s_mov_b32 {sr(S_CNT)}, 0x4000")
    a("s_branch L_oeval")
    a.label("L_osleep")
    a(f"s_sleep {OPT.get('osleep', 4)}")
    a.label("L_oround")
    op_flag_load()
    a("s_waitcnt vmcnt(0)")
    a.label("L_oeval")
    a("s_mov_b64 exec, 0xffff")
    a(f"v_cmp_eq_u64 vcc, {sr(S_NONCE,2)}, {vr(V_FD,2)}")
    a("s_mov_b64 exec, -1")
    a(f"s_sub_u32 {sr(S_CNT)}, {sr(S_CNT)}, 1")
    a(f"s_cselect_b32 {sr(S_T2)}, 0xffff, vcc_lo")
    a(f"s_lshr_b32 {sr(S_T0)}, {sr(S_T2)}, 1")
    a(f"s_and_b32 {sr(S_T0)}, {sr(S_T0)}, {sr(S_T2)}")
    a(f"s_lshr_b32 {sr(S_T1)}, {sr(S_T0)}, 2")
    a(f"s_and_b32 {sr(S_T0)}, {sr(S_T0)}, {sr(S_T1)}")
    a(f"s_add_u32 {sr(S_T2)}, {sr(S_T2)}, 1")
    a(f"s_and_b32 {sr(S_T2)}, {sr(S_T2)}, 0x10000")
    a(f"s_or_b32 {sr(S_T0)}, {sr(S_T0)}, {sr(S_T2)}")
    a(f"s_and_b32 {sr(S_NEW)}, {sr(S_T0)}, {sr(S_PEND)}")
    a(f"s_cmp_lt_u32 {sr(S_NEW)}, {sr(S_WFD)}")
    a("s_cbranch_scc1 L_osleep")
    for ks in range(5):
        a(f"s_bitcmp0_b32 {sr(S_NEW)}, {4*ks}")
        a(f"s_cbranch_scc1 L_ol{ks}")
        for lb in range(4):
            a(f"buffer_load_dwordx4 {vr(OF+16*ks+4*lb,4)}, {vr(V_L16 if ks < 4 else V_LT)}, {sr(SRD_WS,4)}, {sr(S_OM+lb)} offen offset:{(ks%4)*1024} sc1")
        a.label(f"L_ol{ks}")
    a(f"s_cmp_lg_u32 {sr(S_WFD)}, 0")
    a("s_waitcnt vmcnt(0)")
    a("s_cbranch_scc1 L_owf")
    for ks in range(5):
        for ct in range(5):
            for jj in range(2):
                if ks < 4: ad, off = V_WM, (40 * ks + 8 * jj) * 160 + 32 * ct
                else: ad, off = V_WT, 80 * jj * 160 + 32 * ct
                a(f"ds_read_b64_tr_b16 {vr(WF+20*ks+4*ct+2*jj,2)}, {vr(ad)} offset:{off}")
    a(f"s_mov_b32 {sr(S_WFD)}, 1")
    a("s_waitcnt lgkmcnt(0)")
    sstamp(7)
    a.label("L_owf")
    for ks in range(5):
        a(f"s_bitcmp0_b32 {sr(S_NEW)}, {4*ks}")
        a(f"s_cbranch_scc1 L_om{ks}")
        for lb in range(3):
            for ct in range(5): mm(ACC + 20 * lb + 4 * ct, ks, ct, lb)
        a.label(f"L_om{ks}")
    a(f"s_andn2_b32 {sr(S_PEND)}, {sr(S_PEND)}, {sr(S_NEW)}")
    a("s_cbranch_scc1 L_oround")
    own = lambda ct: OF + 16 * ct
    for ct in range(5): mm(own(ct), 0, ct, 3, True)
    for n in range(15):
        a(f"ds_write_b128 {vr(V_RW)}, {vr(ACC+4*n,4)} offset:{1024*n}")
        if n % 3 == 2: mm(own(n // 3), 1, n // 3, 3)
    sb_arrive(10, V_S)
    for ks in range(2, 5):
        for ct in range(5): mm(own(ct), ks, ct, 3)
    a(f"s_add_u32 {sr(S_PH)}, {sr(S_PH)}, 4")
    sb_wait("L_w10", 10, sr(S_PH), V_S)
    for ct in range(5):
        for lb in range(3):
            a.ds(f"ds_read_b128 {vr(ACC+20*lb+4*ct,4)}, {vr(V_RR+lb)} offset:{1024*ct}", ('r', ct))
    for ct in range(5):
        a.wait_lgkm(('r', ct))
        o = own(ct); r = lambda lb, i: vr(ACC + 20 * lb + 4 * ct + 2 * i, 2)
        for i in range(2): a(f"v_pk_add_f32 {r(0,i)}, {r(0,i)}, {r(1,i)}")
        for i in range(2): a(f"v_pk_add_f32 {vr(o+2*i,2)}, {vr(o+2*i,2)}, {r(2,i)}")
        for i in range(2): a(f"v_pk_add_f32 {vr(o+2*i,2)}, {vr(o+2*i,2)}, {r(0,i)}")
        for i in range(2): a(f"v_cvt_pk_bf16_f32 {vr(o+i)}, {vr(o+2*i)}, {vr(o+2*i+1)}")
        a(f"buffer_store_dwordx2 {vr(o,2)}, {vr(V_OS)}, {sr(SRD_OUT,4)}, {sr(S_OS)} offen offset:{ct*32}")
    a(f"s_cmp_eq_u32 {sr(S_PH)}, 8")
    a("s_cbranch_scc1 L_end")
    sb_arrive(11, V_S)
    sstamp(8)
    a(f"s_add_u32 {sr(S_FO)}, {sr(S_FO)}, 1024")
    a(f"s_add_u32 {sr(S_OS)}, {sr(S_OS)}, {128*2560}")
    for lb in range(4): a(f"s_add_u32 {sr(S_OM+lb)}, {sr(S_OM+lb)}, {8*20480}")
    a(f"s_mov_b32 {sr(S_PEND)}, 0x11111")
    for i in range(30): a(f"v_mov_b64 {vr(ACC+2*i,2)}, 0")
    sb_wait("L_w11", 11, 4, V_S)
    a(f"s_mov_b32 {sr(S_CNT)}, 0x4000")
    a("s_branch L_oround")

def finish_stamps(n):
    if not OPT['stamps']: return
    a("s_waitcnt lgkmcnt(0)")
    a(f"s_lshl_b32 {sr(S_T0)}, s2, 3")
    a(f"s_add_u32 {sr(S_T0)}, {sr(S_T0)}, {sr(S_W)}")
    a(f"s_lshl_b32 {sr(S_T0)}, {sr(S_T0)}, 7")
    a(f"s_add_u32 {sr(S_T0)}, {sr(S_T0)}, {STAMP}")
    a("v_mov_b32 v2, 0")
    a("s_mov_b64 exec, 1")
    for i in range(n):
        a(f"v_mov_b32 v4, {sr(S_ST+2*i)}")
        a(f"v_mov_b32 v5, {sr(S_ST+2*i+1)}")
        a(f"buffer_store_dwordx2 v[4:5], v2, {sr(SRD_WS,4)}, {sr(S_T0)} offen offset:{i*8}")
        a("s_nop 1")
    a("s_mov_b64 exec, -1")
    if OPT.get('trace'):
        a(f"s_lshl_b32 {sr(S_T0)}, s2, 3")
        a(f"s_add_u32 {sr(S_T0)}, {sr(S_T0)}, {sr(S_W)}")
        a(f"s_lshl_b32 {sr(S_T0)}, {sr(S_T0)}, 10")
        a(f"s_add_u32 {sr(S_T0)}, {sr(S_T0)}, {STAMP + 0x100000}")
        a("v_lshlrev_b32 v2, 2, v0")
        for i in range(4):
            a(f"buffer_store_dword v{250+i}, v2, {sr(SRD_WS,4)}, {sr(S_T0)} offen offset:{i*256}")

def sstamp(i):
    if OPT.get('trace'):
        a(f"s_mov_b32 {sr(S_CNT)}, {i + 6}")
        trace(252, S_CNT)
    if OPT['stamps']:
        if OPT.get('cyc') == 1 and i in (4, 5): a(f"s_memtime {sr(S_ST + 2 * (i - 3), 2)}")
        stamp(i); a("s_waitcnt lgkmcnt(0)"); a.lgkm = []


def main():
    if OPT.get('trace'):
        for i in range(4): a(f"v_mov_b32 v{250+i}, 0")
    if OPT['stamps']:
        for i in range(20): a(f"s_mov_b32 {sr(S_ST+i)}, 0")
    prologue()
    a(f"s_cmp_ge_u32 {sr(S_W)}, 4")
    a("s_cbranch_scc1 L_loader")
    g_compute()
    g_loader()
    a.label("L_attn")
    a(f"s_mov_b64 {sr(S_NONCE,2)}, 0")
    a(f"s_cmp_ge_u32 {sr(S_Y)}, 30")
    a("s_cbranch_scc1 L_nn1")
    a(f"s_load_dwordx2 {sr(S_NONCE,2)}, {sr(S_DBG,2)}, 0")
    a.label("L_nn1")
    at_setup()
    a("s_waitcnt vmcnt(0)")
    a("s_barrier")
    a(f"s_cmp_lg_u32 {sr(S_W)}, 0")
    a("s_cbranch_scc1 L_nsig")
    a(f"s_cmp_ge_u32 {sr(S_Y)}, 30")
    a("s_cbranch_scc1 L_nsig")
    get_nonce("L_gn0", V_PL)
    a(f"s_lshl_b32 {sr(S_T0)}, {sr(S_CB)}, 4")
    a(f"s_add_u32 {sr(S_T0)}, {sr(S_T0)}, {sr(S_TB)}")
    a(f"s_lshl_b32 {sr(S_T0)}, {sr(S_T0)}, 3")
    a(f"s_add_u32 {sr(S_T0)}, {sr(S_T0)}, {sr(S_FL)}")
    signal_flag(V_PL, S_T0)
    a.label("L_nsig")
    a(f"s_cmp_lg_u32 {sr(S_W)}, 4")
    a("s_cbranch_scc1 L_npoll")
    get_nonce("L_gn1", V_PL)
    g_flag_addr(V_PL, V_PL + 2, 0)
    poll_flags("L_gpoll", [V_PL], V_PL + 2, S_FL)
    a.label("L_npoll")
    stamp(3)
    a("s_barrier")
    if OPT.get('stop_after') == 'g':
        finish_stamps(10); a.label("L_exit"); a("s_endpgm"); return
    a(f"s_load_dwordx2 {sr(S_NONCE,2)}, {sr(S_DBG,2)}, 0")
    a.vm = []
    q_soff(0)
    a.vmem(f"buffer_load_dwordx4 {vr(QA,4)}, {vr(V_L16)}, {sr(SRD_WS,4)}, {sr(S_T0)} offen sc1", 'q')
    a.vmem(f"buffer_load_dwordx2 {vr(TQA,2)}, {vr(V_Q16)}, {sr(SRD_WS,4)}, {sr(S_T1)} offen offset:2048 sc1", 'q')
    for n in range(NPRE): a_dma('ad' if n < 4 else 'ae')
    get_nonce("L_gn2", V_PL)
    a(f"s_mov_b32 {sr(S_DM)}, 20480")
    a.wait_vm('q')
    a(f"s_mov_b64 exec, {sr(S_LO,2)}")
    a(f"v_mov_b64 {vr(QA+4,2)}, {vr(TQA,2)}")
    a(f"s_mov_b64 exec, {sr(S_HI,2)}")
    a(f"v_mov_b64 {vr(QA+6,2)}, {vr(TQA,2)}")
    a("s_mov_b64 exec, -1")
    a.wait_vm('ad')
    a("s_barrier")
    sstamp(4)
    at_a()
    sstamp(5)
    a(f"s_cmp_lt_u32 {sr(S_W)}, 4")
    a("s_cbranch_scc1 L_bstart")
    a("s_waitcnt vmcnt(0)")
    o_flag()
    a("s_branch L_end")
    a.label("L_bstart")
    a("s_waitcnt vmcnt(2)")
    sb_arrive(8, V_T)
    a(f"s_mov_b32 {sr(S_LW)}, {sr(S_W)}")
    a.label("L_bpass")
    b_setup()
    sb_wait("L_w8", 8, 4, V_T)
    at_b()
    a(f"s_cmp_ge_u32 {sr(S_LW)}, 4")
    a(f"s_cselect_b32 {sr(S_T0)}, 1, 64")
    a(f"s_lshl_b32 {sr(S_T0)}, {sr(S_T0)}, 10")
    a(f"s_add_u32 {sr(S_PF)}, {sr(S_PF)}, {sr(S_T0)}")
    a(f"s_cmp_ge_u32 {sr(S_LW)}, 4")
    a("s_cbranch_scc1 L_op")
    a(f"s_add_u32 {sr(S_LW)}, {sr(S_LW)}, 4")
    a(f"s_add_u32 {sr(S_T)}, {sr(S_T)}, 4")
    a(f"s_add_u32 {sr(S_QOFF)}, {sr(S_QOFF)}, 5120")
    a(f"v_add_u32 {vr(V_OA)}, 163840, {vr(V_OA)}")
    a(f"v_add_u32 {vr(V_OT)}, 163840, {vr(V_OT)}")
    a(f"v_mov_b64 {vr(QB,2)}, {vr(QS1,2)}")
    a(f"v_mov_b64 {vr(QB+2,2)}, {vr(QS1+2,2)}")
    a(f"v_mov_b64 {vr(TQB,2)}, {vr(QS1+4,2)}")
    a("s_branch L_bpass")
    a.label("L_op")
    sstamp(6)
    op_phase()
    a.label("L_end")
    if OPT['stamps']:
        a("s_waitcnt vmcnt(0)")
        stamp(9)
    finish_stamps(10)
    a.label("L_exit")
    a("s_endpgm")
    for f in OOL: f()
    fallback()

main()
head = f"""; fused QKV projection + attention (full / sliding window) + output projection, one persistent launch
; @launch grid=(256,1,1) block=(512,1,1) lds=163840
.amdgcn_target "amdgcn-amd-amdhsa--gfx950"
.text
.globl {NAME}_kernel
.p2align 8
.type {NAME}_kernel,@function
{NAME}_kernel:
"""
tail = f""".section .rodata,"a"
.p2align 6
.amdhsa_kernel {NAME}_kernel
  .amdhsa_next_free_vgpr 256
  .amdhsa_next_free_sgpr 102
  .amdhsa_accum_offset 256
  .amdhsa_group_segment_fixed_size 0
  .amdhsa_kernarg_size 72
  .amdhsa_user_sgpr_count 2
  .amdhsa_user_sgpr_kernarg_segment_ptr 1
  .amdhsa_system_sgpr_workgroup_id_x 1
.end_amdhsa_kernel
"""
out = OPT.get('out', 'k.s')
open(out, 'w').write(head + a.text() + tail)
errs = check_hazards(a.lines)
print("lines", len(a.lines), "hazards", len(errs))
```
